```python
import torch

def _softmax(x, axis=-1):
    return torch.softmax(x, dim=axis)
def _gelu(x):
    return torch.nn.functional.gelu(x, approximate="tanh")
def _silu(x):
    return torch.nn.functional.silu(x)
def _sigmoid(x):
    return torch.sigmoid(x)
def _layernorm(x, axis=-1, eps=1e-5):
    m = x.mean(dim=axis, keepdim=True)
    v = x.var(dim=axis, keepdim=True, unbiased=False)
    return (x - m) / torch.sqrt(v + eps)
def _scatter_add(tgt, idx, src, axis=0):
    return tgt.clone().index_add_(axis, idx, src)
def _segment_sum(src, seg, n):
    out = torch.zeros((n,) + src.shape[1:], dtype=src.dtype)
    return out.index_add_(0, seg, src)
def _pad(x, pw):
    flat = tuple(v for pair in reversed(pw) for v in pair)
    return torch.nn.functional.pad(x, flat)

kernel_name = 'standalone__mpnn_edge_mlp__graph'

def setup_inputs():

    _w = (lambda a: (lambda t: t.to(torch.bfloat16) if t.is_floating_point() else t)(torch.as_tensor(a)))
    N, deg, D, De = 50000, 16, 64, max(16, 1)
    E = N * deg
    return {
        "x": _w((lambda *s: torch.randn(*s, dtype=torch.bfloat16) * 0.05)(N, D)),
        "e_attr": _w((lambda *s: torch.randn(*s, dtype=torch.bfloat16) * 0.4)(E, De)),
        "src": _w((lambda lo, hi, *s: torch.randint(lo, hi, s))(0, N, E).to(torch.int64)),
        "dst": _w((lambda lo, hi, *s: torch.randint(lo, hi, s))(0, N, E).to(torch.int64)),
        "w_msg": _w((lambda *s: torch.randn(*s, dtype=torch.bfloat16) * 0.4)(2 * D + De, D)),
        "w_upd": _w((lambda *s: torch.randn(*s, dtype=torch.bfloat16) * 0.05)(2 * D, D)),
    }

def reference(x, e_attr, src, dst, w_msg, w_upd):
    N, D = x.shape
    m_in = torch.concatenate([x[src], x[dst], e_attr], axis=-1)
    msg = _silu(m_in @ w_msg)
    agg = _segment_sum(msg, dst, N)
    return _silu(torch.concatenate([x, agg], axis=-1) @ w_upd)
```

```python
import struct, os
N=50000; E=800000
WS_E2=0; WS_META=0x1900000; WS_T=0x1C80000; WS_WF=0x1D00000
LOG2E=1.4426950408889634; LN2=0.6931471805599453
STP=os.environ.get('STP','sc1')
def f2u(f): return hex(struct.unpack('<I',struct.pack('<f',f))[0])
class Out:
    def __init__(s): s.l=[]
    def __call__(s,x): s.l.append('    '+x)
    def label(s,n,kernel=False):
        if kernel: s.l += [f'.globl {n}','.p2align 8',f'.type {n},@function']
        s.l.append(n+':')
    def text(s): return '\n'.join(s.l)+'\n'
def srd(o,d,lo,hi,n):
    o(f's_mov_b32 s{d}, {lo}'); o(f's_mov_b32 s{d+1}, {hi}'); o(f's_mov_b32 s{d+2}, {n}'); o(f's_mov_b32 s{d+3}, 0x00020000')
def srd_off(o,d,lo,hi,off,n):
    o(f's_add_u32 s{d}, {lo}, {off}'); o(f's_addc_u32 s{d+1}, {hi}, 0'); o(f's_mov_b32 s{d+2}, {n}'); o(f's_mov_b32 s{d+3}, 0x00020000')
def wave_scan(o,v):
    for sh in (1,2,4,8):
        o('s_nop 1'); o(f'v_add_u32_dpp {v}, {v}, {v} row_shr:{sh} row_mask:0xf bank_mask:0xf bound_ctrl:0')
    o('s_nop 1'); o(f'v_add_u32_dpp {v}, {v}, {v} row_bcast:15 row_mask:0xa bank_mask:0xf')
    o('s_nop 1'); o(f'v_add_u32_dpp {v}, {v}, {v} row_bcast:31 row_mask:0xc bank_mask:0xf')
def desc(name,vg,sg=96):
    return f""".p2align 6
.amdhsa_kernel {name}
  .amdhsa_next_free_vgpr {vg}
  .amdhsa_next_free_sgpr {sg}
  .amdhsa_accum_offset {(vg+3)//4*4}
  .amdhsa_group_segment_fixed_size 0
  .amdhsa_kernarg_size 72
  .amdhsa_user_sgpr_count 2
  .amdhsa_user_sgpr_kernarg_segment_ptr 1
  .amdhsa_system_sgpr_workgroup_id_x 1
.end_amdhsa_kernel
"""
```

```python
from common import *

def gen_k1(o):
    RAW=0; SMETA=102400; INV=SMETA+12800; CNT=INV+6400; STARTS=CNT+1024; LDS=STARTS+16*1024
    o.label('k1_kernel', kernel=True)
    o('s_cmp_ge_u32 s2, 253'); o('s_cbranch_scc1 K1_END')
    o('s_load_dwordx4 s[4:7], s[0:1], 8')
    o('s_load_dwordx2 s[8:9], s[0:1], 24')
    o('s_load_dwordx4 s[12:15], s[0:1], 32')
    o('s_load_dwordx2 s[10:11], s[0:1], 64')
    o('v_lshrrev_b32 v1, 6, v0'); o('v_and_b32 v2, 63, v0')
    o('v_readfirstlane_b32 s3, v1')
    o('s_cmp_ge_u32 s2, 250'); o('s_cbranch_scc1 K1_FRAG')
    o('s_waitcnt lgkmcnt(0)')
    srd(o,16,'s4','s5',E*32); srd(o,20,'s6','s7',E*4); srd(o,24,'s8','s9',E*4)
    srd_off(o,28,'s10','s11',WS_E2,E*32); srd_off(o,32,'s10','s11',WS_META,E*4); srd_off(o,36,'s10','s11',WS_T,250*1024)
    o('s_mul_i32 s40, s2, 12800')
    o('s_mul_i32 s41, s2, 102400')
    o('v_lshlrev_b32 v3, 4, v0')
    o('s_movk_i32 s42, 800')
    o('v_cmp_gt_u32 vcc, s42, v0')
    o('v_mov_b32 v5, 0x7ffffff0')
    o('s_nop 0')
    o('v_cndmask_b32 v4, v5, v3, vcc')
    o('buffer_load_dwordx4 v[8:11], v4, s[24:27], s40 offen nt')
    o('buffer_load_dwordx4 v[12:15], v4, s[20:23], s40 offen nt')
    o('s_lshl_b32 s43, s3, 10')
    for k in range(7):
        if k==6:
            o('s_cmp_ge_u32 s3, 4'); o('s_cbranch_scc1 K1_DMADONE')
        o(f's_add_u32 m0, s43, {RAW+k*16384}')
        o(f's_add_u32 s44, s41, {k*16384}')
        o('buffer_load_dwordx4 v3, s[16:19], s44 offen nt lds')
    o.label('K1_DMADONE')
    o('v_mov_b32 v6, 0'); o('v_lshlrev_b32 v7, 2, v0'); o('v_and_b32 v7, 0x3ff, v7')
    o(f'ds_write_b32 v7, v6 offset:0') if False else None
    o(f'v_add_u32 v7, {CNT}, v7'); o('ds_write_b32 v7, v6')
    o('s_waitcnt lgkmcnt(0)'); o('s_barrier')
    o('s_and_saveexec_b64 s[46:47], vcc')
    o('s_cbranch_execz K1_NOHIST')
    o('s_mov_b32 s45, 83887'); o('s_movk_i32 s48, 200'); o('v_mov_b32 v6, 1')
    o('s_waitcnt vmcnt(6)')
    for i in range(4):
        d=8+i; s=12+i
        o(f'v_mul_u32_u24 v{16+i}, s45, v{d}'); o(f'v_lshrrev_b32 v{16+i}, 24, v{16+i}')
        o(f'v_mul_u32_u24 v{20+i}, s48, v{16+i}'); o(f'v_sub_u32 v{20+i}, v{d}, v{20+i}')
        o(f'v_lshlrev_b32 v{16+i}, 2, v{16+i}')
        o(f'v_add_u32 v{24+i}, {CNT}, v{16+i}')
        o(f'ds_add_rtn_u32 v{28+i}, v{24+i}, v6')
    for i in range(4):
        s=12+i
        o(f'v_mul_u32_u24 v{24+i}, 41, v{20+i}'); o(f'v_lshrrev_b32 v{24+i}, 10, v{24+i}')
        o(f'v_mul_u32_u24 v{8+i}, 25, v{24+i}'); o(f'v_sub_u32 v{8+i}, v{20+i}, v{8+i}')
        o(f'v_lshlrev_b32 v{8+i}, 19, v{8+i}')
        o(f'v_lshl_or_b32 v{8+i}, v{24+i}, 24, v{8+i}')
        o(f'v_or_b32 v{s}, v{s}, v{8+i}')
    o.label('K1_NOHIST')
    o('s_mov_b64 exec, s[46:47]')
    o('s_waitcnt lgkmcnt(0)'); o('s_barrier')
    o('v_lshlrev_b32 v32, 4, v2'); o(f'v_add_u32 v33, {CNT}, v32')
    o('ds_read_b128 v[36:39], v33')
    o('s_waitcnt lgkmcnt(0)')
    o('v_add_u32 v41, v36, v37'); o('v_add_u32 v42, v41, v38'); o('v_add_u32 v43, v42, v39')
    o('v_mov_b32 v44, v43')
    wave_scan(o,'v44')
    o('v_sub_u32 v44, v44, v43')
    o('v_add_u32 v45, v44, v36'); o('v_add_u32 v46, v44, v41'); o('v_add_u32 v47, v44, v42')
    o(f's_add_u32 s49, s43, {STARTS}')
    o('v_add_u32 v33, s49, v32')
    o('ds_write_b128 v33, v[44:47]')
    o('s_cmp_lg_u32 s3, 15'); o('s_cbranch_scc1 K1_NOT')
    for i in range(4): o(f'v_lshl_or_b32 v{48+i}, v{36+i}, 16, v{44+i}')
    o('s_lshl_b32 s50, s2, 10')
    o(f'buffer_store_dwordx4 v[48:51], v32, s[36:39], s50 offen {STP}')
    o.label('K1_NOT')
    o('s_and_saveexec_b64 s[46:47], vcc')
    o('s_cbranch_execz K1_NOPOS')
    for i in range(4):
        o(f'v_add_u32 v{16+i}, s49, v{16+i}'); o(f'ds_read_b32 v{20+i}, v{16+i}')
    o('v_lshlrev_b32 v34, 2, v0')
    o('s_waitcnt lgkmcnt(0)')
    for i in range(4):
        o(f'v_add_u32 v{20+i}, v{20+i}, v{28+i}')
        o(f'v_lshlrev_b32 v{24+i}, 2, v{20+i}'); o(f'v_add_u32 v{24+i}, {SMETA}, v{24+i}')
        o(f'ds_write_b32 v{24+i}, v{12+i}')
        o(f'v_lshlrev_b32 v{20+i}, 1, v{20+i}'); o(f'v_add_u32 v{20+i}, {INV}, v{20+i}')
        o(f'v_add_u32 v{8+i}, {i}, v34')
        o(f'ds_write_b16 v{20+i}, v{8+i}')
    o.label('K1_NOPOS')
    o('s_mov_b64 exec, s[46:47]')
    o('s_waitcnt vmcnt(0) lgkmcnt(0)'); o('s_barrier')
    o(f'v_add_u32 v5, {SMETA}, v3')
    o('ds_read_b128 v[8:11], v5')
    o('v_and_b32 v6, 0x3fe, v0'); o(f'v_add_u32 v6, {INV}, v6')
    o('v_and_b32 v7, 1, v0'); o('v_lshlrev_b32 v7, 4, v7')
    for k in range(7): o(f'ds_read_u16 v{16+k}, v6 offset:{k*1024}')
    o('s_waitcnt lgkmcnt(7)')
    o(f'buffer_store_dwordx4 v[8:11], v4, s[32:35], s40 offen {STP}')
    for k in range(7):
        o(f's_waitcnt lgkmcnt({6})')
        o(f'v_lshl_add_u32 v{16+k}, v{16+k}, 5, v7')
        o(f'ds_read_b128 v[{24+4*k}:{27+4*k}], v{16+k}')
    for k in range(7):
        if k==6:
            o('s_cmp_ge_u32 s3, 4'); o('s_cbranch_scc1 K1_END')
        o(f's_add_u32 s44, s41, {k*16384}')
        o(f's_waitcnt lgkmcnt({6-k})')
        o(f'buffer_store_dwordx4 v[{24+4*k}:{27+4*k}], v3, s[28:31], s44 offen {STP}')
    o('s_endpgm')
    o.label('K1_FRAG')
    o('s_sub_u32 s16, s2, 250'); o('s_lshl_b32 s16, s16, 4'); o('s_add_u32 s16, s16, s3')
    o('s_cmp_ge_u32 s16, 36'); o('s_cbranch_scc1 K1_END')
    o('s_waitcnt lgkmcnt(0)')
    srd_off(o,28,'s10','s11',WS_WF,36*1024)
    o('v_and_b32 v3, 31, v2'); o('v_lshrrev_b32 v4, 5, v2')
    o('s_and_b32 s17, s16, 1')
    o('s_lshr_b32 s18, s16, 1')
    o(f's_mov_b32 s19, {f2u(-LOG2E)}')
    o('s_movk_i32 s20, 1024'); o('s_movk_i32 s21, 512')
    o('s_cmp_ge_u32 s16, 20'); o('s_cbranch_scc1 K1_FU')
    srd(o,24,'s12','s13',144*128)
    o('s_lshl_b32 s22, s18, 4')
    o('s_cmp_ge_u32 s18, 4'); o('s_cselect_b32 s22, 128, s22')
    o('s_sub_u32 s23, s18, 6'); o('s_lshl_b32 s23, s23, 4'); o('s_add_u32 s23, s23, 64')
    o('s_cmp_ge_u32 s18, 6'); o('s_cselect_b32 s22, s23, s22'); o('s_cselect_b32 s19, 1.0, s19')
    o('s_lshl_b32 s23, s17, 5'); o('v_add_u32 v5, s23, v3')
    o('s_branch K1_FGO')
    o.label('K1_FU')
    srd(o,24,'s14','s15',128*128)
    o('s_mov_b32 s19, 1.0')
    o('s_sub_u32 s22, s18, 10')
    o('s_cmp_ge_u32 s22, 4'); o('s_cselect_b32 s20, 512, s20'); o('s_cselect_b32 s21, 1024, s21')
    o('s_lshl_b32 s22, s22, 4')
    o('v_bfe_u32 v5, v3, 2, 1'); o('v_lshlrev_b32 v5, 5, v5')
    o('v_lshrrev_b32 v6, 3, v3'); o('v_lshl_add_u32 v5, v6, 2, v5')
    o('v_and_b32 v6, 3, v3'); o('v_add_u32 v5, v5, v6')
    o('s_lshl_b32 s23, s17, 4'); o('v_add_u32 v5, s23, v5')
    o.label('K1_FGO')
    o('s_lshl_b32 s22, s22, 7')
    o('v_lshlrev_b32 v5, 1, v5'); o('v_mul_u32_u24 v6, s20, v4'); o('v_add3_u32 v5, v5, v6, s22')
    o('v_add_u32 v6, s21, v5')
    for j in range(8): o(f'buffer_load_ushort v{8+j}, v{5 if j<4 else 6}, s[24:27], 0 offen offset:{(j&3)*128}')
    o('s_waitcnt vmcnt(0)')
    for j in range(8):
        o(f'v_lshlrev_b32 v{8+j}, 16, v{8+j}'); o(f'v_mul_f32 v{8+j}, s19, v{8+j}')
    for j in range(4): o(f'v_cvt_pk_bf16_f32 v{16+j}, v{8+2*j}, v{9+2*j}')
    o('s_cmp_lg_u32 s18, 5'); o('s_cbranch_scc1 K1_FST')
    for j in range(4):
        o(f'v_lshlrev_b32 v20, 16, v{16+j}'); o(f'v_and_b32 v21, 0xffff0000, v{16+j}')
        o(f'v_sub_f32 v20, v{8+2*j}, v20'); o(f'v_sub_f32 v21, v{9+2*j}, v21')
        o(f'v_cvt_pk_bf16_f32 v{16+j}, v20, v21')
    o.label('K1_FST')
    o('v_lshlrev_b32 v7, 4, v2'); o('s_lshl_b32 s16, s16, 10')
    o('buffer_store_dwordx4 v[16:19], v7, s[28:31], s16 offen')
    o.label('K1_END')
    o('s_endpgm')
    return LDS
```

```python
from common import *
CNT=0; LUT1=64; LUT2=2176; SRC=4224; EP=12416; DL=20608; XS=24704; EB=41088; CAPE=3584
LDS=EB+CAPE*32
WS,WE,Q,AGG,P=128,160,176,192,(224,240)
XB=(64,80); XA=96; EA=112; OHA=116; OHT=56; TMP=40
cXg=(2,3); cXw=4; cXr=(5,6,7,8); pSRC=9; pEP=10; pDL=11; pD4=12; cE=13; cL2=14; cL1=15
vBase,vCnt,vG0=16,17,18
vD4=19; vEP=20; vDL=21; vS=22
aT=24
aX=28
def r(a,n): return f'v[{a}:{a+n-1}]'
def mfma(d,a,b,c=None): return f'v_mfma_f32_32x32x16_bf16 {r(d,16)}, {r(a,4)}, {r(b,4)}, {r(d,16) if c is None else c}'
def pre_mfmas(nt):
    d=P[nt]; l=[mfma(d,EA,WE+4*nt,'0')]
    if WELO: l.append(mfma(d,EA,WE+8+4*nt))
    l+=[mfma(d,OHA+4*s,Q+8*s+4*nt) for s in range(2)]
    l+=[mfma(d,XA+4*s,WS+8*s+4*nt) for s in range(4)]
    return l
WELO=int(os.environ.get('WELO','1'))
def xaddr():
    return [f'v_mad_u32_u16 v{aX+j}, v{vS+j//2}, s60, v{cXg[j%2]} op_sel:[{j%2},0,0,0]' for j in range(4)]
def xloads(b): return [f'buffer_load_dwordx4 {r(XB[b]+4*j,4)}, v{aX+j}, s[16:19], 0 offen' for j in range(4)]
def transp(b):
    l=[]
    for half in range(2):
        blk=[f'ds_write_b128 v{cXw}, {r(XB[b]+8*half+4*j,4)} offset:{1024*j}' for j in range(2)]
        blk+=[f's_mov_b64 exec, s[{62+2*half}:{63+2*half}]']+[f'ds_read_b128 {r(XA+4*s,4)}, v{cXr[s]}' for s in range(4)]+['s_mov_b64 exec, -1']
        l.append(blk)
    return l
def eaddr(): return [f'v_lshl_add_u32 v{vEP}, v{vEP}, 5, v{cE}', f'v_lshl_add_u32 v{vDL}, v{vDL}, 1, v{cL2}']
def ereads(): return [f'ds_read_b128 {r(EA,4)}, v{vEP}']+[f'ds_read_b128 {r(OHA+4*s,4)}, v{vDL} offset:{1024*s}' for s in range(2)]
def silu(p):
    l=[]
    for g in range(2):
        b=p+8*g
        l+=[f'v_exp_f32 v{TMP+i}, v{b+i}' for i in range(8)]
        l+=[f'v_add_f32 v{TMP+i}, 1.0, v{TMP+i}' for i in range(8)]
        l+=[f'v_rcp_f32 v{TMP+i}, v{TMP+i}' for i in range(8)]
        l+=[f'v_mul_f32 v{TMP+i}, v{b+i}, v{TMP+i}' for i in range(8)]
        l+=[f'v_cvt_pk_bf16_f32 v{p+4*g+i}, v{TMP+2*i}, v{TMP+2*i+1}' for i in range(4)]
    return l
def weave(o,main,side):
    for i in range(len(main)+1):
        for x in side.get(i,[]): o(x)
        if i<len(main): o(main[i])

def gen_k2(o):
    o.label('k2_kernel', kernel=True)
    o('s_and_b32 s3, s2, 7'); o('s_lshl_b32 s3, s3, 5'); o('s_lshr_b32 s4, s2, 3'); o('s_add_u32 s3, s3, s4')
    o('s_cmp_ge_u32 s2, 256'); o('s_cbranch_scc1 K2_END')
    o('s_cmp_ge_u32 s3, 250'); o('s_cbranch_scc1 K2_END')
    o('s_load_dwordx2 s[4:5], s[0:1], 0'); o('s_load_dwordx2 s[6:7], s[0:1], 48'); o('s_load_dwordx2 s[10:11], s[0:1], 64')
    o('v_lshrrev_b32 v32, 6, v0'); o('v_and_b32 v1, 63, v0'); o('v_readfirstlane_b32 s12, v32')
    o('v_lshrrev_b32 v33, 1, v0'); o('v_lshlrev_b32 v34, 10, v33')
    o('s_lshl_b32 s13, s3, 2')
    o('v_and_b32 v35, 31, v1'); o('v_lshrrev_b32 v36, 5, v1')
    o('s_mul_i32 s14, s3, 200'); o('s_mul_i32 s15, s12, 25'); o('s_add_u32 s14, s14, s15'); o('s_lshl_b32 s14, s14, 7')
    o('v_lshlrev_b32 v37, 7, v35'); o('v_lshl_add_u32 v37, v36, 4, v37')
    o('v_cmp_gt_u32 vcc, 25, v35'); o('v_mov_b32 v38, 0x7ffffff0'); o('s_nop 0'); o('v_cndmask_b32 v37, v38, v37, vcc')
    o('v_lshlrev_b32 v38, 4, v1')
    o('s_waitcnt lgkmcnt(0)')
    srd_off(o,36,'s10','s11',WS_T,250*1024)
    o('buffer_load_dword v39, v34, s[36:39], s13 offen')
    srd(o,16,'s4','s5',N*128); srd(o,20,'s6','s7',N*128)
    srd_off(o,28,'s10','s11',WS_E2,E*32); srd_off(o,32,'s10','s11',WS_META,E*4); srd_off(o,40,'s10','s11',WS_WF,36*1024)
    for s in range(4): o(f'buffer_load_dwordx4 {r(XA+4*s,4)}, v37, s[16:19], s14 offen offset:{32*s}')
    def wload(dst,fid):
        o(f's_mov_b32 s44, {(fid//4)*4096}') if fid%4==0 else None
        o(f'buffer_load_dwordx4 {r(dst,4)}, v38, s[40:43], s44 offen offset:{(fid%4)*1024}')
    for i in range(8): wload(AGG+4*i,12+i)
    for i in range(12): wload(WS+4*i,i)
    o('s_movk_i32 s60, 128')
    o('s_mov_b32 s62, 0x0000ffff'); o('s_mov_b32 s63, 0x0000ffff'); o('s_mov_b32 s64, 0xffff0000'); o('s_mov_b32 s65, 0xffff0000')
    o('v_and_b32 v40, 7, v1'); o('v_lshrrev_b32 v41, 4, v1'); o('v_xor_b32 v40, v40, v41')
    o(f'v_lshlrev_b32 v{cXg[0]}, 4, v40'); o(f'v_xor_b32 v{cXg[1]}, 64, v{cXg[0]}')
    o('s_lshl_b32 s45, s12, 11'); o(f's_add_u32 s45, s45, {XS}')
    o(f'v_add_u32 v{cXw}, s45, v38')
    o('v_and_b32 v40, 15, v1'); o('v_lshrrev_b32 v41, 1, v40'); o('v_xor_b32 v41, v41, v36'); o('v_lshlrev_b32 v41, 4, v41')
    o('v_lshlrev_b32 v40, 7, v40'); o('v_add_u32 v40, s45, v40')
    for s in range(4):
        o(f'v_xor_b32 v42, {32*s}, v41'); o(f'v_add_u32 v{cXr[s]}, v40, v42')
    o(f'v_lshlrev_b32 v{cE}, 4, v36'); o(f'v_add_u32 v{cE}, {EB}, v{cE}')
    o(f'v_lshlrev_b32 v{cL2}, 9, v36'); o(f'v_add_u32 v{cL2}, {LUT2}, v{cL2}')
    o('v_bfe_u32 v40, v1, 4, 1'); o('v_and_b32 v41, 3, v1'); o('v_lshl_add_u32 v40, v40, 2, v41')
    o(f'v_mul_u32_u24 v{cL1}, 264, v40'); o(f'v_add_u32 v{cL1}, {LUT1}, v{cL1}')
    o('v_bfe_u32 v40, v0, 5, 3')
    o('v_lshlrev_b32 v41, 2, v40'); o('v_sub_u32 v41, v35, v41')
    o('v_cmp_gt_u32 vcc, 4, v41')
    o('v_mov_b32 v42, 0x3f80'); o('v_mov_b32 v43, 0'); o('v_cndmask_b32 v42, v43, v42, vcc')
    o('v_lshlrev_b32 v41, 4, v41'); o('v_lshlrev_b64 v[42:43], v41, v[42:43]')
    o('v_mul_u32_u24 v44, 264, v40'); o('v_lshl_add_u32 v44, v35, 3, v44')
    o(f'ds_write_b64 v44, v[42:43] offset:{LUT1}')
    o('v_lshrrev_b32 v44, 2, v40'); o('v_lshlrev_b32 v44, 10, v44')
    o('v_and_b32 v45, 1, v40'); o('v_lshl_add_u32 v44, v45, 9, v44')
    o('v_bfe_u32 v45, v40, 1, 1'); o('v_lshl_add_u32 v44, v45, 3, v44'); o('v_lshl_add_u32 v44, v35, 4, v44')
    o(f'ds_write_b64 v44, v[42:43] offset:{LUT2}')
    o('v_mov_b32 v44, 0'); o(f'ds_write_b32 v44, v44 offset:{CNT+32}')
    o('s_mov_b32 s50, 0'); o(f's_movk_i32 s51, {CAPE}'); o('s_mov_b32 s52, 1')
    o.label('K2_ROUND')
    o('v_lshlrev_b32 v40, 4, v0'); o('v_lshlrev_b32 v41, 3, v0')
    for i in range(4): o(f'v_mov_b32 v{44+i}, -1'); o(f'v_mov_b32 v{48+i}, 0'); o(f'v_mov_b32 v{52+i}, 0x03ffffff')
    o('v_mov_b32 v42, 0xf8f8f8f8'); o('v_mov_b32 v43, 0xf8f8f8f8')
    o(f'ds_write_b128 v40, v[44:47] offset:{SRC}'); o(f'ds_write_b128 v40, v[48:51] offset:{EP}')
    o(f'ds_write_b64 v41, v[42:43] offset:{DL}')
    o(f'ds_write_b128 v40, v[52:55] offset:{XS}'); o(f'ds_write_b128 v40, v[52:55] offset:{XS+8192}')
    o(f'ds_write_b128 v48, v[48:51] offset:{CNT}'); o(f'ds_write_b128 v48, v[48:51] offset:{CNT+16}')
    o('s_waitcnt lgkmcnt(0)'); o('s_barrier')
    o('s_cmp_eq_u32 s52, 0'); o('s_cbranch_scc1 K2_NOSCAN')
    o('s_waitcnt vmcnt(24)')
    o(f'v_lshrrev_b32 v{vCnt}, 16, v39'); o('v_and_b32 v39, 0xffff, v39')
    o('s_movk_i32 s46, 3200'); o(f'v_mad_u32_u24 v{vG0}, v33, s46, v39')
    o('v_and_b32 v40, 1, v0'); o('v_cmp_eq_u32 vcc, 0, v40'); o('s_nop 1'); o(f'v_cndmask_b32 v41, 0, v{vCnt}, vcc')
    wave_scan(o,'v41')
    o('s_nop 0'); o('v_readlane_b32 s46, v41, 63')
    o('s_mov_b64 exec, 1'); o('v_mov_b32 v43, 0'); o('v_mov_b32 v42, s46')
    o(f'ds_add_rtn_u32 v42, v43, v42 offset:{CNT+32}')
    o('s_waitcnt lgkmcnt(0)'); o('v_readfirstlane_b32 s46, v42'); o('s_mov_b64 exec, -1')
    o(f'v_sub_u32 v{vBase}, v41, v{vCnt}'); o(f'v_add_u32 v{vBase}, s46, v{vBase}')
    o.label('K2_NOSCAN')
    o(f'v_sub_u32 v40, s50, v{vBase}')
    o('v_add_u32 v41, s51, v40'); o(f'v_min_i32 v41, v41, v{vCnt}')
    o('v_max_i32 v42, 0, v40'); o('v_and_b32 v43, 1, v0'); o('v_add_u32 v42, v42, v43')
    o('v_sub_u32 v43, v42, v40'); o('v_lshlrev_b32 v43, 2, v43')
    o(f'v_add_u32 v42, v42, v{vG0}'); o(f'v_add_u32 v41, v41, v{vG0}')
    o.label('K2_GL')
    o('v_cmp_lt_i32 vcc, v42, v41'); o('s_and_b64 exec, exec, vcc'); o('s_cbranch_execz K2_GD')
    o(f'ds_write_b32 v43, v42 offset:{XS}')
    o('v_add_u32 v42, 2, v42'); o('v_add_u32 v43, 8, v43'); o('s_branch K2_GL')
    o.label('K2_GD')
    o('s_mov_b64 exec, -1')
    o('s_waitcnt lgkmcnt(0)'); o('s_barrier')
    o('v_lshlrev_b32 v40, 2, v0'); o('v_mov_b32 v41, 0')
    for k in range(7): o(f'ds_read_b32 v{44+k}, v40 offset:{XS+2048*k}')
    o(f'ds_read_b32 v41, v41 offset:{CNT+32}')
    o('v_and_b32 v42, 0x1fe, v0'); o('v_lshlrev_b32 v42, 1, v42')
    o('v_and_b32 v43, 1, v0'); o('v_lshlrev_b32 v43, 4, v43')
    o('s_waitcnt lgkmcnt(0)')
    for k in range(14): o(f'ds_read_b32 v{64+k}, v42 offset:{XS+1024*k}')
    for k in range(7):
        o(f'v_lshlrev_b32 v{44+k}, 2, v{44+k}'); o(f'buffer_load_dword v{44+k}, v{44+k}, s[32:35], 0 offen')
    o('v_readfirstlane_b32 s53, v41')
    o('s_lshl_b32 s47, s12, 10'); o(f's_add_u32 s47, s47, {EB}')
    o('s_waitcnt lgkmcnt(0)')
    for k in range(14):
        o(f's_add_u32 m0, s47, {8192*k}')
        o(f'v_lshl_add_u32 v{64+k}, v{64+k}, 5, v43')
        o(f'buffer_load_dwordx4 v{64+k}, s[28:31], 0 offen {ELP} lds')
    o('s_sub_u32 s54, s53, s50'); o('s_min_u32 s54, s54, s51')
    o('s_cmp_eq_u32 s52, 0'); o('s_cbranch_scc1 K2_NOQ')
    o('s_mov_b32 s52, 0')
    o('s_waitcnt vmcnt(21)')
    for nt in range(2):
        for s in range(4): o(mfma(P[nt],XA+4*s,AGG+8*s+4*nt,'0' if s==0 else None))
    o(f's_mov_b32 s46, {f2u(-LOG2E)}')
    o('s_nop 11')
    for nt in range(2):
        for i in range(16): o(f'v_mul_f32 v{P[nt]+i}, s46, v{P[nt]+i}')
        for s in range(2):
            for i in range(4): o(f'v_cvt_pk_bf16_f32 v{Q+8*s+4*nt+i}, v{P[nt]+8*s+2*i}, v{P[nt]+8*s+2*i+1}')
    for i in range(32): o(f'v_mov_b32 v{AGG+i}, 0')
    o.label('K2_NOQ')
    o('v_mov_b32 v41, 1')
    for k in range(7):
        o(f'v_add_u32 v{64+k}, {512*k}, v0')
        o(f'v_cmp_gt_u32 s[{66+2*k}:{67+2*k}], s54, v{64+k}')
    for k in range(7):
        o(f's_waitcnt vmcnt({20-k})')
        o(f'v_lshrrev_b32 v{72+k}, 24, v{44+k}'); o(f'v_lshlrev_b32 v{80+k}, 2, v{72+k}')
        o(f's_mov_b64 exec, s[{66+2*k}:{67+2*k}]')
        o(f'ds_add_rtn_u32 v{80+k}, v{80+k}, v41 offset:{CNT}')
        o('s_mov_b64 exec, -1')
    o('s_movk_i32 s46, 512')
    for k in range(7):
        o(f's_waitcnt lgkmcnt({min(15,6-k+3*k)})')
        o(f'v_cmp_gt_u32 vcc, s46, v{80+k}')
        o(f'v_lshl_add_u32 v{80+k}, v{72+k}, 9, v{80+k}'); o(f'v_lshlrev_b32 v{72+k}, 1, v{80+k}')
        o(f's_and_b64 exec, vcc, s[{66+2*k}:{67+2*k}]')
        o(f'ds_write_b16 v{72+k}, v{44+k} offset:{SRC}')
        o(f'ds_write_b16 v{72+k}, v{64+k} offset:{EP}')
        o(f'ds_write_b8_d16_hi v{80+k}, v{44+k} offset:{DL}')
        o('s_mov_b64 exec, -1')
    o('s_lshl_b32 s47, s12, 9')
    o('v_lshrrev_b32 v40, 3, v1'); o('v_lshlrev_b32 v40, 2, v40'); o('v_add_u32 v40, s47, v40'); o(f'v_lshlrev_b32 v{pSRC}, 1, v40')
    o('v_and_b32 v40, 7, v1'); o('v_bfe_u32 v41, v1, 3, 2'); o('v_lshl_add_u32 v40, v40, 2, v41')
    o(f'v_add_u32 v{pDL}, s47, v40'); o(f'v_lshlrev_b32 v{pEP}, 1, v{pDL}')
    o('v_lshrrev_b32 v40, 5, v1'); o('v_bfe_u32 v41, v1, 2, 2'); o('v_lshl_add_u32 v40, v40, 2, v41')
    o('v_lshlrev_b32 v40, 2, v40'); o(f'v_add_u32 v{pD4}, s47, v40')
    o('v_and_b32 v40, 7, v1'); o('v_lshlrev_b32 v40, 2, v40')
    o('s_waitcnt lgkmcnt(0)'); o('s_barrier')
    o(f'ds_read_b32 v41, v40 offset:{CNT}')
    o(f'ds_read_b64 {r(vS,2)}, v{pSRC} offset:{SRC}')
    o(f'ds_read_b64 v[42:43], v{pSRC} offset:{SRC+64}')
    o(f'ds_read_u16 v{vEP}, v{pEP} offset:{EP}'); o(f'ds_read_u8 v{vDL}, v{pDL} offset:{DL}')
    o('s_waitcnt lgkmcnt(0)')
    o('v_cmp_lt_u32 vcc, s46, v41'); o('v_readlane_b32 s55, v41, s12')
    o('s_cmp_lg_u64 vcc, 0'); o('s_cbranch_scc1 K2_OVF')
    for x in xaddr()+xloads(0): o(x)
    o(f'v_mov_b32 v{vS}, v42'); o(f'v_mov_b32 v{vS+1}, v43')
    for x in xaddr()+xloads(1): o(x)
    o(f'ds_read_b64 {r(vS,2)}, v{pSRC} offset:{SRC+128}')
    o('s_add_u32 s55, s55, 31'); o('s_lshr_b32 s55, s55, 5')
    o('s_waitcnt vmcnt(8)'); o('s_barrier')
    o('s_cmp_eq_u32 s55, 0'); o('s_cbranch_scc1 K2_LOOPEND')
    for x in eaddr()+ereads(): o(x)
    o('s_waitcnt vmcnt(4)')
    for blk in transp(0):
        for x in blk: o(x)
    o('s_waitcnt lgkmcnt(0)')
    for x in xaddr()+xloads(0): o(x)
    for x in pre_mfmas(0): o(x)
    o('s_nop 7')
    o.label('K2_LOOP')
    for u in range(2):
        nb=(u+1)%2
        m=pre_mfmas(1); side={}
        side[0]=[f'ds_read_b32 v{vD4}, v{pD4} offset:{DL+32*u}', f'ds_read_u16 v{vEP}, v{pEP} offset:{EP+64*(u+1)}',
                 f'ds_read_u8 v{vDL}, v{pDL} offset:{DL+32*(u+1)}', f'ds_read_b64 {r(vS,2)}, v{pSRC} offset:{SRC+64*(u+3)}']
        posA=[0,3,6,12,17,20,23,30][:len(m)]
        for p,x in zip(posA,m): side.setdefault(p,[]).append(x)
        side.setdefault(9,[]).extend(['s_waitcnt lgkmcnt(0)']+[f'v_add_u32_sdwa v{aT+q}, v{vD4}, v{cL1} dst_sel:DWORD dst_unused:UNUSED_PAD src0_sel:BYTE_{q} src1_sel:DWORD' for q in range(4)])
        side.setdefault(14,[]).extend([f'ds_read_b64_tr_b16 {r(OHT+2*q,2)}, v{aT+q}' for q in range(4)])
        side.setdefault(26,[]).extend(eaddr()+xaddr())
        t=transp(nb)
        side.setdefault(36,[]).extend(['s_waitcnt vmcnt(4)']+t[0])
        side.setdefault(42,[]).extend(t[1])
        side.setdefault(48,[]).extend(ereads())
        side.setdefault(60,[]).extend(['s_waitcnt lgkmcnt(7)']+xloads(nb)+[mfma(AGG,P[0],OHT)])
        side.setdefault(72,[]).extend(['s_nop 1',mfma(AGG,P[0]+4,OHT+4)])
        weave(o,silu(P[0]),side)
        m=pre_mfmas(0); side={}
        posB=[4,8,16,20,24,36,40,44][:len(m)]
        side[4]=['s_waitcnt lgkmcnt(0)']
        for p,x in zip(posB,m): side.setdefault(p,[]).append(x)
        side.setdefault(52,[]).append(mfma(AGG+16,P[1],OHT))
        if u==1:
            side.setdefault(60,[]).extend([f'v_add_u32 v{pSRC}, 128, v{pSRC}',f'v_add_u32 v{pEP}, 128, v{pEP}',f'v_add_u32 v{pDL}, 64, v{pDL}',f'v_add_u32 v{pD4}, 64, v{pD4}'])
        side.setdefault(72,[]).extend(['s_sub_u32 s55, s55, 1','s_cmp_eq_u32 s55, 0',mfma(AGG+16,P[1]+4,OHT+4)])
        weave(o,silu(P[1]),side)
        o('s_cbranch_scc1 K2_LOOPEND' if u==0 else 's_cbranch_scc0 K2_LOOP')
    o.label('K2_LOOPEND')
    o('s_add_u32 s50, s50, s51'); o('s_cmp_ge_u32 s50, s53'); o('s_cbranch_scc1 K2_EPI')
    o('s_waitcnt vmcnt(0) lgkmcnt(0)'); o('s_barrier'); o('s_branch K2_ROUND')
    o.label('K2_OVF')
    o('s_movk_i32 s51, 512'); o('s_waitcnt vmcnt(0) lgkmcnt(0)'); o('s_barrier'); o('s_branch K2_ROUND')
    o.label('K2_EPI')
    o('s_waitcnt vmcnt(0) lgkmcnt(0)')
    for s in range(4): o(f'buffer_load_dwordx4 {r(40+4*s,4)}, v37, s[16:19], s14 offen offset:{32*s}')
    for i in range(16): wload(64+4*i,20+i)
    o(f's_mov_b32 s46, {f2u(-LN2)}'); o(f's_mov_b32 s47, {f2u(-LOG2E)}')
    for i in range(32): o(f'v_mul_f32 v{AGG+i}, s46, v{AGG+i}')
    for i in range(16): o(f'v_cvt_pk_bf16_f32 v{AGG+i}, v{AGG+2*i}, v{AGG+2*i+1}')
    o('v_cmp_gt_u32 vcc, 25, v35'); o('v_lshlrev_b32 v2, 7, v35'); o('v_lshl_add_u32 v2, v36, 6, v2'); o('v_mov_b32 v3, 0x7ffffff0')
    o('v_cndmask_b32 v2, v3, v2, vcc')
    o('s_waitcnt vmcnt(0)')
    for mt in range(2):
        for ks in range(8):
            b=40+4*ks if ks<4 else AGG+4*(ks-4)
            o(mfma(P[mt],64+8*ks+4*mt,b,'0' if ks==0 else None))
    o('s_nop 11')
    for mt in range(2):
        p=P[mt]
        for i in range(16): o(f'v_mul_f32 v{64+i}, s47, v{p+i}')
        for i in range(16): o(f'v_exp_f32 v{64+i}, v{64+i}')
        for i in range(16): o(f'v_add_f32 v{64+i}, 1.0, v{64+i}')
        for i in range(16): o(f'v_rcp_f32 v{64+i}, v{64+i}')
        for i in range(16): o(f'v_mul_f32 v{64+i}, v{p+i}, v{64+i}')
        for i in range(8): o(f'v_cvt_pk_bf16_f32 v{80+8*mt+i}, v{64+2*i}, v{65+2*i}')
        for q in range(2): o(f'buffer_store_dwordx4 {r(80+8*mt+4*q,4)}, v2, s[20:23], s14 offen offset:{32*mt+16*q}')
    o.label('K2_END')
    o('s_endpgm')
    return LDS
ELP=os.environ.get('ELP','')
```

```python
import sys
from common import *
import k1,k2
o=Out()
l1=k1.gen_k1(o); l2=k2.gen_k2(o)
hdr=open('standalone__mpnn_edge_mlp__graph.s.ref').read().split('; Override launch')[0]
txt=hdr+f"""; @launch kernel=k1_kernel grid=(253,1,1) block=(1024,1,1) lds={l1}
; @launch kernel=k2_kernel grid=(256,1,1) block=(512,1,1) lds={l2}
.amdgcn_target "amdgcn-amd-amdhsa--gfx950"
.text
"""+o.text()+'.section .rodata,"a"\n'+desc('k1_kernel',64)+desc('k2_kernel',256)
out=sys.argv[1] if len(sys.argv)>1 else 'standalone__mpnn_edge_mlp__graph.s'
open(out,'w').write(txt)
```

```python
import struct, os
N=50000; E=800000
WS_E2=0; WS_META=0x1900000; WS_T=0x1C80000; WS_WF=0x1D00000; WS_M2=0x2200000
M=int(os.environ.get('M','1024'))
LOG2E=1.4426950408889634; LN2=0.6931471805599453
STP=os.environ.get('STP','sc1')
def f2u(f): return hex(struct.unpack('<I',struct.pack('<f',f))[0])
class Out:
    def __init__(s): s.l=[]
    def __call__(s,x): s.l.append('    '+x)
    def label(s,n,kernel=False):
        if kernel: s.l += [f'.globl {n}','.p2align 8',f'.type {n},@function']
        s.l.append(n+':')
    def text(s): return '\n'.join(s.l)+'\n'
def srd(o,d,lo,hi,n):
    o(f's_mov_b32 s{d}, {lo}'); o(f's_mov_b32 s{d+1}, {hi}'); o(f's_mov_b32 s{d+2}, {n}'); o(f's_mov_b32 s{d+3}, 0x00020000')
def srd_off(o,d,lo,hi,off,n):
    o(f's_add_u32 s{d}, {lo}, {off}'); o(f's_addc_u32 s{d+1}, {hi}, 0'); o(f's_mov_b32 s{d+2}, {n}'); o(f's_mov_b32 s{d+3}, 0x00020000')
def wave_scan(o,v):
    for sh in (1,2,4,8):
        o('s_nop 1'); o(f'v_add_u32_dpp {v}, {v}, {v} row_shr:{sh} row_mask:0xf bank_mask:0xf bound_ctrl:0')
    o('s_nop 1'); o(f'v_add_u32_dpp {v}, {v}, {v} row_bcast:15 row_mask:0xa bank_mask:0xf')
    o('s_nop 1'); o(f'v_add_u32_dpp {v}, {v}, {v} row_bcast:31 row_mask:0xc bank_mask:0xf')
def desc(name,vg,sg=102):
    return f""".p2align 6
.amdhsa_kernel {name}
  .amdhsa_next_free_vgpr {vg}
  .amdhsa_next_free_sgpr {sg}
  .amdhsa_accum_offset {(vg+3)//4*4}
  .amdhsa_group_segment_fixed_size 0
  .amdhsa_kernarg_size 72
  .amdhsa_user_sgpr_count 2
  .amdhsa_user_sgpr_kernarg_segment_ptr 1
  .amdhsa_system_sgpr_workgroup_id_x 1
.end_amdhsa_kernel
"""

STAMP=os.environ.get('STAMP','')
def stamp(o,k,who):
    if STAMP!=who: return
    o('s_memrealtime s[80:81]'); o('s_waitcnt lgkmcnt(0)'); o(f's_mov_b32 s{82+k}, s80')
def stamp_init(o,who):
    if STAMP!=who: return
    for k in range(16): o(f's_mov_b32 s{82+k}, 0')
def stamp_out(o,who,swg,swave,nw,lo='s10',hi='s11'):
    if STAMP!=who: return
    o('s_mov_b64 exec, -1')
    for k in range(16): o(f'v_writelane_b32 v60, s{82+k}, {k}')
    srd_off(o,76,lo,hi,0x2000000,1<<20)
    o(f's_mul_i32 s80, {swg}, {nw}'); o(f's_add_u32 s80, s80, {swave}'); o('s_lshl_b32 s80, s80, 6')
    o('v_mbcnt_lo_u32_b32 v61, -1, 0'); o('v_mbcnt_hi_u32_b32 v61, -1, v61'); o('v_lshlrev_b32 v61, 2, v61')
    o('s_mov_b64 exec, 0xffff')
    o('buffer_store_dword v60, v61, s[76:79], s80 offen')

def cyc(o,k,end):
    if STAMP!='2': return
    o('s_memtime s[80:81]'); o('s_waitcnt lgkmcnt(0)')
    o(f's_sub_u32 s{82+k}, s80, s{82+k}')
XP=int(os.environ.get('XP','0'))
```

```python
from common import *

def gen_k1(o):
    RAW=0; SMETA=102400; INV=SMETA+12800; CNT=INV+6400; STARTS=CNT+1024; LDS=STARTS+16*1024
    o.label('k1_kernel', kernel=True)
    o('s_cmp_ge_u32 s2, 253'); o('s_cbranch_scc1 K1_END')
    stamp_init(o,'1'); stamp(o,0,'1')
    o('s_load_dwordx4 s[4:7], s[0:1], 8')
    o('s_load_dwordx2 s[8:9], s[0:1], 24')
    o('s_load_dwordx4 s[12:15], s[0:1], 32')
    o('s_load_dwordx2 s[10:11], s[0:1], 64')
    o('v_lshrrev_b32 v1, 6, v0'); o('v_and_b32 v2, 63, v0')
    o('v_readfirstlane_b32 s3, v1')
    o('s_cmp_ge_u32 s2, 250'); o('s_cbranch_scc1 K1_FRAG')
    o('s_waitcnt lgkmcnt(0)')
    srd(o,16,'s4','s5',E*32); srd(o,20,'s6','s7',E*4); srd(o,24,'s8','s9',E*4)
    srd_off(o,28,'s10','s11',WS_E2,E*32); srd_off(o,32,'s10','s11',WS_META,E*4); srd_off(o,36,'s10','s11',WS_T,250*1024)
    o('s_mul_i32 s40, s2, 12800')
    o('s_mul_i32 s41, s2, 102400')
    o('v_lshlrev_b32 v3, 4, v0')
    o('s_movk_i32 s42, 800')
    o('v_cmp_gt_u32 vcc, s42, v0')
    o('v_mov_b32 v5, 0x7ffffff0')
    o('s_nop 0')
    o('v_cndmask_b32 v4, v5, v3, vcc')
    o('buffer_load_dwordx4 v[8:11], v4, s[24:27], s40 offen nt')
    o('buffer_load_dwordx4 v[12:15], v4, s[20:23], s40 offen nt')
    o('s_lshl_b32 s43, s3, 10')
    for k in range(7):
        if k==6:
            o('s_cmp_ge_u32 s3, 4'); o('s_cbranch_scc1 K1_DMADONE')
        o(f's_add_u32 m0, s43, {RAW+k*16384}')
        o(f's_add_u32 s44, s41, {k*16384}')
        o('buffer_load_dwordx4 v3, s[16:19], s44 offen nt lds')
    o.label('K1_DMADONE')
    stamp(o,1,'1')
    o('v_mov_b32 v6, 0'); o('v_lshlrev_b32 v7, 2, v0'); o('v_and_b32 v7, 0x3ff, v7')
    o(f'ds_write_b32 v7, v6 offset:0') if False else None
    o(f'v_add_u32 v7, {CNT}, v7'); o('ds_write_b32 v7, v6')
    o('s_waitcnt lgkmcnt(0)'); o('s_barrier')
    o('s_and_saveexec_b64 s[46:47], vcc')
    o('s_cbranch_execz K1_NOHIST')
    o('s_mov_b32 s45, 83887'); o('s_movk_i32 s48, 200'); o('v_mov_b32 v6, 1')
    o('s_waitcnt vmcnt(6)')
    stamp(o,2,'1')
    for i in range(4):
        d=8+i; s=12+i
        o(f'v_mul_u32_u24 v{16+i}, s45, v{d}'); o(f'v_lshrrev_b32 v{16+i}, 24, v{16+i}')
        o(f'v_mul_u32_u24 v{20+i}, s48, v{16+i}'); o(f'v_sub_u32 v{20+i}, v{d}, v{20+i}')
        o(f'v_lshlrev_b32 v{16+i}, 2, v{16+i}')
        o(f'v_add_u32 v{24+i}, {CNT}, v{16+i}')
        o(f'ds_add_rtn_u32 v{28+i}, v{24+i}, v6')
    for i in range(4):
        s=12+i
        o(f'v_mul_u32_u24 v{24+i}, 41, v{20+i}'); o(f'v_lshrrev_b32 v{24+i}, 10, v{24+i}')
        o(f'v_mul_u32_u24 v{8+i}, 25, v{24+i}'); o(f'v_sub_u32 v{8+i}, v{20+i}, v{8+i}')
        o(f'v_lshlrev_b32 v{8+i}, 19, v{8+i}')
        o(f'v_lshl_or_b32 v{8+i}, v{24+i}, 24, v{8+i}')
        o(f'v_or_b32 v{s}, v{s}, v{8+i}')
    o.label('K1_NOHIST')
    o('s_mov_b64 exec, s[46:47]')
    o('s_waitcnt lgkmcnt(0)'); o('s_barrier')
    stamp(o,3,'1')
    o('v_lshlrev_b32 v32, 4, v2'); o(f'v_add_u32 v33, {CNT}, v32')
    o('ds_read_b128 v[36:39], v33')
    o('s_waitcnt lgkmcnt(0)')
    o('v_add_u32 v41, v36, v37'); o('v_add_u32 v42, v41, v38'); o('v_add_u32 v43, v42, v39')
    o('v_mov_b32 v44, v43')
    wave_scan(o,'v44')
    o('v_sub_u32 v44, v44, v43')
    o('v_add_u32 v45, v44, v36'); o('v_add_u32 v46, v44, v41'); o('v_add_u32 v47, v44, v42')
    o(f's_add_u32 s49, s43, {STARTS}')
    o('v_add_u32 v33, s49, v32')
    o('ds_write_b128 v33, v[44:47]')
    o('s_cmp_lg_u32 s3, 15'); o('s_cbranch_scc1 K1_NOT')
    for i in range(4): o(f'v_lshl_or_b32 v{48+i}, v{36+i}, 16, v{44+i}')
    o('s_lshl_b32 s50, s2, 10')
    o(f'buffer_store_dwordx4 v[48:51], v32, s[36:39], s50 offen {STP}')
    o.label('K1_NOT')
    o('s_and_saveexec_b64 s[46:47], vcc')
    o('s_cbranch_execz K1_NOPOS')
    for i in range(4):
        o(f'v_add_u32 v{16+i}, s49, v{16+i}'); o(f'ds_read_b32 v{20+i}, v{16+i}')
    o('v_lshlrev_b32 v34, 2, v0')
    o('s_waitcnt lgkmcnt(0)')
    for i in range(4):
        o(f'v_add_u32 v{20+i}, v{20+i}, v{28+i}')
        o(f'v_lshlrev_b32 v{24+i}, 2, v{20+i}'); o(f'v_add_u32 v{24+i}, {SMETA}, v{24+i}')
        o(f'ds_write_b32 v{24+i}, v{12+i}')
        o(f'v_lshlrev_b32 v{20+i}, 1, v{20+i}'); o(f'v_add_u32 v{20+i}, {INV}, v{20+i}')
        o(f'v_add_u32 v{8+i}, {i}, v34')
        o(f'ds_write_b16 v{20+i}, v{8+i}')
    o.label('K1_NOPOS')
    o('s_mov_b64 exec, s[46:47]')
    stamp(o,4,'1')
    o('s_waitcnt vmcnt(0) lgkmcnt(0)'); o('s_barrier')
    stamp(o,5,'1')
    o(f'v_add_u32 v5, {SMETA}, v3')
    o('ds_read_b128 v[8:11], v5')
    o('v_and_b32 v6, 0x3fe, v0'); o(f'v_add_u32 v6, {INV}, v6')
    o('v_and_b32 v7, 1, v0'); o('v_lshlrev_b32 v7, 4, v7')
    for k in range(7): o(f'ds_read_u16 v{16+k}, v6 offset:{k*1024}')
    o('s_waitcnt lgkmcnt(7)')
    o(f'buffer_store_dwordx4 v[8:11], v4, s[32:35], s40 offen {STP}')
    for k in range(7):
        o(f's_waitcnt lgkmcnt({6})')
        o(f'v_lshl_add_u32 v{16+k}, v{16+k}, 5, v7')
        o(f'ds_read_b128 v[{24+4*k}:{27+4*k}], v{16+k}')
    for k in range(7):
        if k==6:
            o('s_cmp_ge_u32 s3, 4'); o('s_cbranch_scc1 K1_FIN')
        o(f's_add_u32 s44, s41, {k*16384}')
        o(f's_waitcnt lgkmcnt({6-k})')
        o(f'buffer_store_dwordx4 v[{24+4*k}:{27+4*k}], v3, s[28:31], s44 offen {STP}')
    o.label('K1_FIN')
    stamp(o,6,'1')
    o('s_waitcnt vmcnt(0)') if STAMP=='1' else None
    stamp(o,7,'1'); stamp_out(o,'1','s2','s3',16)
    o('s_endpgm')
    o.label('K1_FRAG')
    o('s_sub_u32 s16, s2, 250'); o('s_lshl_b32 s16, s16, 4'); o('s_add_u32 s16, s16, s3')
    o('s_cmp_ge_u32 s16, 36'); o('s_cbranch_scc1 K1_END')
    o('s_waitcnt lgkmcnt(0)')
    srd_off(o,28,'s10','s11',WS_WF,36*1024)
    o('v_and_b32 v3, 31, v2'); o('v_lshrrev_b32 v4, 5, v2')
    o('s_and_b32 s17, s16, 1')
    o('s_lshr_b32 s18, s16, 1')
    o(f's_mov_b32 s19, {f2u(-LOG2E)}')
    o('s_movk_i32 s20, 1024'); o('s_movk_i32 s21, 512')
    o('s_cmp_ge_u32 s16, 20'); o('s_cbranch_scc1 K1_FU')
    srd(o,24,'s12','s13',144*128)
    o('s_lshl_b32 s22, s18, 4')
    o('s_cmp_ge_u32 s18, 4'); o('s_cselect_b32 s22, 128, s22')
    o('s_sub_u32 s23, s18, 6'); o('s_lshl_b32 s23, s23, 4'); o('s_add_u32 s23, s23, 64')
    o('s_cmp_ge_u32 s18, 6'); o('s_cselect_b32 s22, s23, s22'); o('s_cselect_b32 s19, 1.0, s19')
    o('s_lshl_b32 s23, s17, 5'); o('v_add_u32 v5, s23, v3')
    o('s_branch K1_FGO')
    o.label('K1_FU')
    srd(o,24,'s14','s15',128*128)
    o('s_mov_b32 s19, 1.0')
    o('s_sub_u32 s22, s18, 10')
    o('s_cmp_ge_u32 s22, 4'); o('s_cselect_b32 s20, 512, s20'); o('s_cselect_b32 s21, 1024, s21')
    o('s_lshl_b32 s22, s22, 4')
    o('v_bfe_u32 v5, v3, 2, 1'); o('v_lshlrev_b32 v5, 5, v5')
    o('v_lshrrev_b32 v6, 3, v3'); o('v_lshl_add_u32 v5, v6, 2, v5')
    o('v_and_b32 v6, 3, v3'); o('v_add_u32 v5, v5, v6')
    o('s_lshl_b32 s23, s17, 4'); o('v_add_u32 v5, s23, v5')
    o.label('K1_FGO')
    o('s_lshl_b32 s22, s22, 7')
    o('v_lshlrev_b32 v5, 1, v5'); o('v_mul_u32_u24 v6, s20, v4'); o('v_add3_u32 v5, v5, v6, s22')
    o('v_add_u32 v6, s21, v5')
    for j in range(8): o(f'buffer_load_ushort v{8+j}, v{5 if j<4 else 6}, s[24:27], 0 offen offset:{(j&3)*128}')
    o('s_waitcnt vmcnt(0)')
    for j in range(8):
        o(f'v_lshlrev_b32 v{8+j}, 16, v{8+j}'); o(f'v_mul_f32 v{8+j}, s19, v{8+j}')
    for j in range(4): o(f'v_cvt_pk_bf16_f32 v{16+j}, v{8+2*j}, v{9+2*j}')
    o('s_cmp_lg_u32 s18, 5'); o('s_cbranch_scc1 K1_FST')
    for j in range(4):
        o(f'v_lshlrev_b32 v20, 16, v{16+j}'); o(f'v_and_b32 v21, 0xffff0000, v{16+j}')
        o(f'v_sub_f32 v20, v{8+2*j}, v20'); o(f'v_sub_f32 v21, v{9+2*j}, v21')
        o(f'v_cvt_pk_bf16_f32 v{16+j}, v20, v21')
    o.label('K1_FST')
    o('v_lshlrev_b32 v7, 4, v2'); o('s_lshl_b32 s16, s16, 10')
    o('buffer_store_dwordx4 v[16:19], v7, s[28:31], s16 offen')
    o.label('K1_END')
    o('s_endpgm')
    return LDS
```

```python
from common import *
CNT=0; LUT1=128; LUT2=2240; SRC=4288; EP=12480; DL=20672; XS=24832; EB=41216; CAPE=3584
LDS=EB+CAPE*32
WS,WE,Q,AGG,P=128,160,176,192,(224,240)
XB=(64,80,96); XA=96; EA=112; OHA=116; OHT=56; TMP=40
cXg=(2,3); cXw=4; cXr=(5,6,7,8); pSRC=9; pEP=10; pDL=11; pD4=12; cE=13; cL2=14; cL1=15
vBase,vCnt,vG0=16,17,18
vD4=19; vEP=20; vDL=21; vS=22
aT=24
aX=28
vDMA=(124,125,126,127,32,33,34,39)
TOT=CNT+64
def r(a,n): return f'v[{a}:{a+n-1}]'
def mfma(d,a,b,c=None): return f'v_mfma_f32_32x32x16_bf16 {r(d,16)}, {r(a,4)}, {r(b,4)}, {r(d,16) if c is None else c}'

WELO=int(os.environ.get('WELO','1')); ELP=os.environ.get('ELP',''); BAL=int(os.environ.get('BAL','1'))
NX=int(os.environ.get('NX','4')); PRIO=int(os.environ.get('PRIO','0')); PRIOA=int(os.environ.get('PRIOA','0'))
DROP=os.environ.get('DROP','').split(',')
def pre_x(nt,b): return [mfma(P[nt],XB[b]+4*s,WS+8*s+4*nt,'0' if s==0 else None) for s in range(4)][:NX]+['s_nop 0']*(4-NX)
def pre_r(nt):
    d=P[nt]; l=[mfma(d,OHA+4*s,Q+8*s+4*nt) for s in range(2)]+[mfma(d,EA,WE+4*nt)]
    if WELO: l.append(mfma(d,EA,WE+8+4*nt))
    return l
def aggm(nt): return [mfma(AGG+16*nt,P[nt]+4*s,OHT+4*s) for s in range(2)]
def xaddr(): return [f'v_lshl_add_u32 v{aX}, v{vS}, 7, v{cXg[0]}']
def xloads(b): return [f'buffer_load_dwordx4 {r(XB[b]+4*j,4)}, v{aX}, s[16:19], 0 offen offset:{32*j}' for j in range(4)]
def sread(off,v=None): return f'ds_read_u16 v{v or vS}, v{pEP} offset:{SRC+64*off}'
def eaddr(): return [f'v_lshl_add_u32 v{vEP}, v{vEP}, 5, v{cE}', f'v_lshl_add_u32 v{vDL}, v{vDL}, 1, v{cL2}']
def ereads(): return [f'ds_read_b128 {r(OHA+4*s,4)}, v{vDL} offset:{1024*s}' for s in range(2)]+[f'ds_read_b128 {r(EA,4)}, v{vEP}']
def taddr(): return [f'v_add_u32_sdwa v{aT+q}, v{vD4}, v{cL1} dst_sel:DWORD dst_unused:UNUSED_PAD src0_sel:BYTE_{q} src1_sel:DWORD' for q in range(4)]
def treads(): return [f'ds_read_b64_tr_b16 {r(OHT+2*q,2)}, v{aT+q}' for q in range(4)]
def dma(k,v): return [f's_add_u32 m0, s57, {8192*k}', 's_nop 0', f'buffer_load_dwordx4 v{v}, s[28:31], 0 offen {ELP} lds']
def silu(p):
    l=[f'v_exp_f32 v{TMP+i}, v{p+i}' for i in range(16)]
    l+=[f'v_pk_add_f32 {r(TMP+i,2)}, {r(TMP+i,2)}, 1.0 op_sel_hi:[1,0]' for i in range(0,16,2)]
    l+=[f'v_rcp_f32 v{TMP+i}, v{TMP+i}' for i in range(16)]
    l+=[f'v_pk_mul_f32 {r(TMP+i,2)}, {r(p+i,2)}, {r(TMP+i,2)}' for i in range(0,16,2)]
    l+=[f'v_cvt_pk_bf16_f32 v{p+i}, v{TMP+2*i}, v{TMP+2*i+1}' for i in range(8)]
    return l
def weave(o0,main,side):
    def o(x):
        if x.endswith(':'): o0.label(x[:-1]); return
        for d in DROP:
            if d and x.startswith(d): return
        o0(x)
    for i in range(len(main)+1):
        for x in side.get(i,[]): o(x)
        if i<len(main): o(main[i])
class Side(dict):
    def add(s,p,x): s.setdefault(p,[]).extend(x if isinstance(x,list) else [x])
uid=[0]
def phaseA(o,u,dmas,barchk,first=False):
    S=Side(); off=u
    S.add(0,[f'ds_read_b32 v{vD4}, v{pD4} offset:{DL+32*off}', sread(off+3), f'ds_read_u16 v{vEP}, v{pEP} offset:{EP+64*(off+1)}',
             f'ds_read_u8 v{vDL}, v{pDL} offset:{DL+32*(off+1)}'])
    if PRIO: S.add(PRIOA,'s_setprio 1')
    if not first: S.add(1,aggm(1)[1])
    for p,x in zip((4,7,10,13),pre_x(1,u)): S.add(p,x)
    S.add(14,['s_waitcnt lgkmcnt(0)']+xaddr()+taddr())
    for k,v in dmas: S.add(15,dma(k,v))
    for i,x in enumerate(xloads(u)): S.add(16+i,x)
    for i,x in enumerate(treads()): S.add(20+i,x)
    for p,x in zip((24,27,30,33),pre_r(1)): S.add(p,x)
    S.add(35,eaddr())
    if barchk:
        uid[0]+=1; L=f'K2_NB{uid[0]}'
        S.add(37,['s_sub_u32 s56, s56, 1','s_cmp_lg_u32 s56, 0',f's_cbranch_scc1 {L}','s_waitcnt vmcnt(8)','s_barrier',L+':'])
    for i,x in enumerate(ereads()): S.add(37+i,x)
    S.add(54,['s_waitcnt lgkmcnt(3)',aggm(0)[0]])
    weave(o,silu(P[0]),S)
def phaseB(o,u,vm,inc,last=None):
    S=Side()
    S.add(2,aggm(0)[1])
    if last is None:
        S.add(5,f's_waitcnt vmcnt({vm})')
        S.add(24,'s_waitcnt lgkmcnt(0)')
        for p,x in zip((5,8,11,24,27,30,33,36),pre_x(0,(u+1)%3)+pre_r(0)): S.add(p,x)
        if inc: S.add(14,[f'v_add_u32 v{pEP}, {64*inc}, v{pEP}',f'v_add_u32 v{pDL}, {32*inc}, v{pDL}',f'v_add_u32 v{pD4}, {32*inc}, v{pD4}'])
    else:
        S.add(3,last)
    if PRIO: S.add(PRIO,'s_setprio 0')
    S.add(54,aggm(1)[0])
    weave(o,silu(P[1]),S)

def gen_k2(o):
    o.label('k2_kernel', kernel=True)
    o('s_and_b32 s3, s2, 7'); o('s_lshl_b32 s3, s3, 5'); o('s_lshr_b32 s4, s2, 3'); o('s_add_u32 s3, s3, s4')
    o('s_cmp_ge_u32 s2, 256'); o('s_cbranch_scc1 K2_END')
    o('s_cmp_ge_u32 s3, 250'); o('s_cbranch_scc1 K2_END')
    stamp_init(o,'2'); stamp(o,0,'2')
    o('s_load_dwordx2 s[4:5], s[0:1], 0'); o('s_load_dwordx2 s[6:7], s[0:1], 48'); o('s_load_dwordx2 s[10:11], s[0:1], 64')
    o('v_lshrrev_b32 v32, 6, v0'); o('v_and_b32 v1, 63, v0'); o('v_readfirstlane_b32 s12, v32')
    o('v_lshrrev_b32 v33, 1, v0'); o('v_lshlrev_b32 v34, 10, v33')
    o('s_lshl_b32 s13, s3, 2')
    o('v_and_b32 v35, 31, v1'); o('v_lshrrev_b32 v36, 5, v1')
    o('s_mul_i32 s14, s3, 200'); o('s_mul_i32 s15, s12, 25'); o('s_add_u32 s14, s14, s15'); o('s_lshl_b32 s14, s14, 7')
    o('v_lshlrev_b32 v37, 7, v35'); o('v_lshl_add_u32 v37, v36, 4, v37')
    o('v_cmp_gt_u32 vcc, 25, v35'); o('v_mov_b32 v38, 0x7ffffff0'); o('s_nop 0'); o('v_cndmask_b32 v37, v38, v37, vcc')
    o('v_lshlrev_b32 v38, 4, v1')
    o('s_waitcnt lgkmcnt(0)')
    srd_off(o,36,'s10','s11',WS_T,250*1024)
    o('buffer_load_dword v39, v34, s[36:39], s13 offen')
    srd(o,16,'s4','s5',N*128); srd(o,20,'s6','s7',N*128)
    srd_off(o,28,'s10','s11',WS_E2,E*32); srd_off(o,32,'s10','s11',WS_META,E*4); srd_off(o,40,'s10','s11',WS_WF,36*1024)
    o('s_lshl_b32 s44, s12, 10'); o(f's_add_u32 s57, s44, {EB}')
    for k in range(3):
        if k==2: o('s_cmp_ge_u32 s12, 4'); o('s_cbranch_scc1 K2_WD')
        o(f's_add_u32 m0, s57, {8192*k}'); o(f's_add_u32 s45, s44, {8192*k}')
        o('buffer_load_dwordx4 v38, s[40:43], s45 offen lds')
    o.label('K2_WD')
    o('s_movk_i32 s60, 128')
    o('s_mov_b32 s62, 0x0000ffff'); o('s_mov_b32 s63, 0x0000ffff'); o('s_mov_b32 s64, 0xffff0000'); o('s_mov_b32 s65, 0xffff0000')
    o(f'v_lshlrev_b32 v{cXg[0]}, 4, v36')
    o(f'v_lshlrev_b32 v{cE}, 4, v36'); o(f'v_add_u32 v{cE}, {EB}, v{cE}')
    o(f'v_lshlrev_b32 v{cL2}, 9, v36'); o(f'v_add_u32 v{cL2}, {LUT2}, v{cL2}')
    o('v_bfe_u32 v40, v1, 4, 1'); o('v_and_b32 v41, 3, v1'); o('v_lshl_add_u32 v40, v40, 2, v41')
    o(f'v_mul_u32_u24 v{cL1}, 264, v40'); o(f'v_add_u32 v{cL1}, {LUT1}, v{cL1}')
    o('v_bfe_u32 v40, v0, 5, 3')
    o('v_lshlrev_b32 v41, 2, v40'); o('v_sub_u32 v41, v35, v41')
    o('v_cmp_gt_u32 vcc, 4, v41')
    o('v_mov_b32 v42, 0x3f80'); o('v_mov_b32 v43, 0'); o('v_cndmask_b32 v42, v43, v42, vcc')
    o('v_lshlrev_b32 v41, 4, v41'); o('v_lshlrev_b64 v[42:43], v41, v[42:43]')
    o('v_mul_u32_u24 v44, 264, v40'); o('v_lshl_add_u32 v44, v35, 3, v44')
    o(f'ds_write_b64 v44, v[42:43] offset:{LUT1}')
    o('v_lshrrev_b32 v44, 2, v40'); o('v_lshlrev_b32 v44, 10, v44')
    o('v_and_b32 v45, 1, v40'); o('v_lshl_add_u32 v44, v45, 9, v44')
    o('v_bfe_u32 v45, v40, 1, 1'); o('v_lshl_add_u32 v44, v45, 3, v44'); o('v_lshl_add_u32 v44, v35, 4, v44')
    o(f'ds_write_b64 v44, v[42:43] offset:{LUT2}')
    o('v_mov_b32 v44, 0'); o(f'ds_write_b32 v44, v44 offset:{TOT}')
    o('s_mov_b32 s50, 0'); o(f's_movk_i32 s51, {CAPE}'); o('s_mov_b32 s52, 1')
    o.label('K2_ROUND')
    o('v_lshlrev_b32 v40, 4, v0'); o('v_lshlrev_b32 v41, 3, v0')
    for i in range(4): o(f'v_mov_b32 v{44+i}, -1'); o(f'v_mov_b32 v{48+i}, 0'); o(f'v_mov_b32 v{52+i}, 0x03ffffff')
    o('v_mov_b32 v42, 0xf8f8f8f8'); o('v_mov_b32 v43, 0xf8f8f8f8')
    o(f'ds_write_b128 v40, v[44:47] offset:{SRC}'); o(f'ds_write_b128 v40, v[48:51] offset:{EP}')
    o(f'ds_write_b64 v41, v[42:43] offset:{DL}')
    o(f'ds_write_b128 v40, v[52:55] offset:{XS}'); o(f'ds_write_b128 v40, v[52:55] offset:{XS+8192}')
    [o(f'ds_write_b128 v48, v[48:51] offset:{CNT+16*i}') for i in range(4)]
    o('s_waitcnt vmcnt(0) lgkmcnt(0)'); o('s_barrier')
    o('s_cmp_eq_u32 s52, 0'); o('s_cbranch_scc1 K2_NOSCAN')
    stamp(o,1,'2')
    o(f'v_lshrrev_b32 v{vCnt}, 16, v39'); o('v_and_b32 v39, 0xffff, v39')
    o(f'v_add_u32 v44, {EB}, v38')
    for i in range(20): o(f'ds_read_b128 {r(WS+4*i if i<12 else AGG+4*(i-12),4)}, v44 offset:{1024*i}')
    o('s_movk_i32 s46, 3200'); o(f'v_mad_u32_u24 v{vG0}, v33, s46, v39')
    o('v_and_b32 v40, 1, v0'); o('v_cmp_eq_u32 vcc, 0, v40'); o('s_nop 1'); o(f'v_cndmask_b32 v41, 0, v{vCnt}, vcc')
    wave_scan(o,'v41')
    o('s_nop 0'); o('v_readlane_b32 s46, v41, 63')
    o('s_mov_b64 exec, 1'); o('v_mov_b32 v43, 0'); o('v_mov_b32 v42, s46')
    o(f'ds_add_rtn_u32 v42, v43, v42 offset:{TOT}')
    o('s_waitcnt lgkmcnt(0)'); o('v_readfirstlane_b32 s46, v42'); o('s_mov_b64 exec, -1')
    o(f'v_sub_u32 v{vBase}, v41, v{vCnt}'); o(f'v_add_u32 v{vBase}, s46, v{vBase}')
    o.label('K2_NOSCAN')
    o(f'v_sub_u32 v40, s50, v{vBase}')
    o('v_add_u32 v41, s51, v40'); o(f'v_min_i32 v41, v41, v{vCnt}')
    o('v_max_i32 v42, 0, v40'); o('v_and_b32 v43, 1, v0'); o('v_add_u32 v42, v42, v43')
    o('v_sub_u32 v43, v42, v40'); o('v_lshlrev_b32 v43, 2, v43')
    o(f'v_add_u32 v42, v42, v{vG0}'); o(f'v_add_u32 v41, v41, v{vG0}')
    o.label('K2_GL')
    o('v_cmp_lt_i32 vcc, v42, v41'); o('s_and_b64 exec, exec, vcc'); o('s_cbranch_execz K2_GD')
    o(f'ds_write_b32 v43, v42 offset:{XS}')
    o('v_add_u32 v42, 2, v42'); o('v_add_u32 v43, 8, v43'); o('s_branch K2_GL')
    o.label('K2_GD')
    o('s_mov_b64 exec, -1')
    o('s_waitcnt lgkmcnt(0)'); o('s_barrier')
    stamp(o,2,'2')
    o('v_lshlrev_b32 v40, 2, v0'); o('v_mov_b32 v41, 0')
    for k in range(7): o(f'ds_read_b32 v{44+k}, v40 offset:{XS+2048*k}')
    o(f'ds_read_b32 v41, v41 offset:{TOT}')
    o('v_and_b32 v42, 0x1fe, v0'); o('v_lshlrev_b32 v42, 1, v42')
    o('v_and_b32 v43, 1, v0'); o('v_lshlrev_b32 v43, 4, v43')
    o('s_waitcnt lgkmcnt(0)')
    dv=[64+k for k in range(6)]+list(vDMA)
    for k in range(14): o(f'ds_read_b32 v{dv[k]}, v42 offset:{XS+1024*k}')
    for k in range(7):
        o(f'v_lshlrev_b32 v{44+k}, 2, v{44+k}'); o(f'buffer_load_dword v{44+k}, v{44+k}, s[32:35], 0 offen')
    o('v_readfirstlane_b32 s53, v41')
    o('s_waitcnt lgkmcnt(0)')
    for k in range(14): o(f'v_lshl_add_u32 v{dv[k]}, v{dv[k]}, 5, v43')
    for k in range(6):
        for x in dma(k,dv[k]): o(x)
    o('s_sub_u32 s54, s53, s50'); o('s_min_u32 s54, s54, s51')
    stamp(o,3,'2')
    o('v_mov_b32 v41, 1')
    for k in range(7):
        o(f'v_add_u32 v{64+k}, {512*k}, v0')
        o(f'v_cmp_gt_u32 s[{66+2*k}:{67+2*k}], s54, v{64+k}')
    for k in range(7):
        o(f's_waitcnt vmcnt({12-k})')
        o(f'v_lshrrev_b32 v{72+k}, 24, v{44+k}'); o(f'v_lshlrev_b32 v{88+k}, 2, v{72+k}')
        o(f's_mov_b64 exec, s[{66+2*k}:{67+2*k}]')
        o(f'ds_add_rtn_u32 v{80+k}, v{88+k}, v41 offset:{CNT+(0 if k<3 else 32)}')
        o('s_mov_b64 exec, -1')
    o('s_movk_i32 s46, 512')
    stamp(o,4,'2')
    def lw(k):
        o(f'v_cmp_gt_u32 vcc, s46, v{80+k}')
        o(f'v_lshl_add_u32 v{80+k}, v{72+k}, 9, v{80+k}'); o(f'v_lshlrev_b32 v{72+k}, 1, v{80+k}')
        o(f's_and_b64 exec, vcc, s[{66+2*k}:{67+2*k}]')
        o(f'ds_write_b16 v{72+k}, v{44+k} offset:{SRC}')
        o(f'ds_write_b16 v{72+k}, v{64+k} offset:{EP}')
        o(f'ds_write_b8_d16_hi v{80+k}, v{44+k} offset:{DL}')
        o('s_mov_b64 exec, -1')
    for k in range(3):
        o(f's_waitcnt lgkmcnt({6-k+3*k})'); lw(k)
    o('v_and_b32 v40, 7, v1'); o('v_lshlrev_b32 v40, 2, v40')
    o('v_lshrrev_b32 v52, 3, v1'); o('v_lshlrev_b32 v52, 2, v52')
    o('s_waitcnt lgkmcnt(0)'); o('s_barrier')
    stamp(o,5,'2')
    o(f'ds_read2_b32 v[42:43], v40 offset0:{CNT//4} offset1:{CNT//4+8}')
    o(f'ds_read2_b32 v[54:55], v52 offset0:{CNT//4} offset1:{CNT//4+8}')
    for k in range(3,7): o(f'ds_read_b32 v{88+k}, v{88+k} offset:{CNT}')
    o('s_waitcnt lgkmcnt(4)')
    o('v_add_u32 v41, v42, v43')
    o('s_cmp_eq_u32 s52, 0'); o('s_cbranch_scc1 K2_NOSEL')
    if BAL:
        o('v_add_u32 v53, v54, v55'); o('v_lshl_add_u32 v53, v53, 5, v52'); o('v_lshl_add_u32 v54, v41, 5, v40')
        o('v_cmp_gt_u32 vcc, v54, v53')
        o('s_sub_u32 s47, 11, s12'); o('s_cmp_lt_u32 s12, 4'); o('s_cselect_b32 s47, s12, s47')
        o('s_mov_b32 s58, 0')
        for gi in range(1,8):
            o(f's_bfe_u32 s48, {"vcc_lo" if gi<4 else "vcc_hi"}, {hex((8<<16)|(8*(gi%4)))}'); o('s_bcnt1_i32_b32 s48, s48')
            o('s_cmp_eq_u32 s48, s47'); o(f's_cselect_b32 s58, {gi}, s58')
    else: o('s_mov_b32 s58, s12')
    o('s_mul_i32 s14, s3, 200'); o('s_mul_i32 s15, s58, 25'); o('s_add_u32 s14, s14, s15'); o('s_lshl_b32 s14, s14, 7')
    for s in range(4): o(f'buffer_load_dwordx4 {r(XA+4*s,4)}, v37, s[16:19], s14 offen offset:{32*s}')
    o.label('K2_NOSEL')
    o('s_waitcnt lgkmcnt(0)')
    for k in range(3,7):
        o(f'v_add_u32 v{80+k}, v{80+k}, v{88+k}'); lw(k)
    o('s_lshl_b32 s47, s58, 9')
    o('v_and_b32 v40, 7, v1'); o('v_bfe_u32 v53, v1, 3, 2'); o('v_lshl_add_u32 v40, v40, 2, v53')
    o(f'v_add_u32 v{pDL}, s47, v40'); o(f'v_lshlrev_b32 v{pEP}, 1, v{pDL}')
    o('v_bfe_u32 v53, v1, 2, 2'); o('v_lshl_add_u32 v40, v36, 2, v53')
    o('v_lshlrev_b32 v40, 2, v40'); o(f'v_add_u32 v{pD4}, s47, v40')
    o('v_cmp_lt_u32 vcc, s46, v41'); o('v_readlane_b32 s55, v41, s58'); o('v_readlane_b32 s56, v42, s58')
    o('s_waitcnt lgkmcnt(0)'); o('s_barrier')
    stamp(o,6,'2')
    o(sread(0)); o(sread(1,42)); o(sread(2,43))
    o(f'ds_read_u16 v{vEP}, v{pEP} offset:{EP}'); o(f'ds_read_u8 v{vDL}, v{pDL} offset:{DL}')
    o('s_add_u32 s55, s55, 31'); o('s_lshr_b32 s55, s55, 5'); o('s_lshr_b32 s56, s56, 5')
    o('s_mov_b64 s[48:49], vcc')
    o('s_cmp_ge_u32 s56, 4'); o('s_cbranch_scc1 K2_NOEARLY')
    for k in range(6,14):
        for x in dma(k,dv[k]): o(x)
    o.label('K2_NOEARLY')
    o('s_waitcnt lgkmcnt(0)')
    for x in xaddr()+xloads(0): o(x)
    o(f'v_mov_b32 v{vS}, v42')
    for x in xaddr()+xloads(1): o(x)
    o(f'v_mov_b32 v{vS}, v43')
    o('s_waitcnt vmcnt(8)')
    o('s_cmp_eq_u32 s52, 0'); o('s_cbranch_scc1 K2_NOQ')
    o('s_mov_b32 s52, 0')
    for nt in range(2):
        for s in range(4): o(mfma(P[nt],XA+4*s,AGG+8*s+4*nt,'0' if s==0 else None))
    o(f's_mov_b32 s46, {f2u(-LOG2E)}')
    o('s_nop 11')
    for nt in range(2):
        for i in range(16): o(f'v_mul_f32 v{P[nt]+i}, s46, v{P[nt]+i}')
        for s in range(2):
            for i in range(4): o(f'v_cvt_pk_bf16_f32 v{Q+8*s+4*nt+i}, v{P[nt]+8*s+2*i}, v{P[nt]+8*s+2*i+1}')
    for i in range(32): o(f'v_mov_b32 v{AGG+i}, 0')
    o.label('K2_NOQ')
    for x in xaddr()+xloads(2): o(x)
    o('s_cmp_lg_u64 s[48:49], 0'); o('s_cbranch_scc1 K2_OVF')
    o('s_barrier')
    stamp(o,7,'2')
    o('s_cmp_lg_u32 s56, 0'); o('s_cbranch_scc1 K2_NB0'); o('s_barrier'); o.label('K2_NB0')
    o('s_add_u32 s50, s50, s51')
    o('s_cmp_eq_u32 s55, 0'); o('s_cbranch_scc1 K2_LOOPEND')
    for x in eaddr()+ereads(): o(x)
    for i in range(4): o(f'v_mov_b32 v{OHT+4+i}, 0'); o(f'v_mov_b32 v{P[1]+4+i}, 0')
    o('s_waitcnt vmcnt(8) lgkmcnt(0)')
    for x in pre_x(0,0)+pre_r(0): o(x)
    o('s_nop 7')
    stamp(o,8,'2'); cyc(o,12,0)
    o('s_cmp_lt_u32 s56, 4'); o('s_cbranch_scc1 K2_LOOP')
    o('s_sub_u32 s55, s55, 3'); o('s_sub_u32 s56, s56, 3')
    for t,ks,vm in ((0,(6,7,8),11),(1,(9,10,11),14),(2,(12,13),13)):
        phaseA(o,t,[(k,dv[k]) for k in ks],False,first=(t==0))
        phaseB(o,t,vm,3 if t==2 else 0)
    o.label('K2_LOOP')
    for u in range(3):
        phaseA(o,u,[],True)
        o('s_sub_u32 s55, s55, 1'); o('s_cmp_eq_u32 s55, 0'); o('s_cbranch_scc1 K2_LAST')
        phaseB(o,u,8,3 if u==2 else 0)
    o('s_branch K2_LOOP')
    def epi_loads():
        l=[f'buffer_load_dwordx4 {r(XA+4*s,4)}, v37, s[16:19], s14 offen offset:{32*s}' for s in range(4)]
        for i in range(16):
            if i%4==0: l.append(f's_mov_b32 s44, {20480+i*1024}')
            l.append(f'buffer_load_dwordx4 {r(WS+4*i,4)}, v38, s[40:43], s44 offen offset:{(i%4)*1024}')
        return l
    o.label('K2_LAST')
    phaseB(o,0,0,0,last=['s_waitcnt lgkmcnt(0)','s_cmp_lt_u32 s50, s53','s_cbranch_scc1 K2_NOEL']+epi_loads()+['K2_NOEL:'])
    o('s_nop 1'); o(aggm(1)[1])
    o('s_cmp_ge_u32 s50, s53'); o('s_cbranch_scc1 K2_EPI')
    o.label('K2_LOOPEND')
    o('s_cmp_ge_u32 s50, s53'); o('s_cbranch_scc1 K2_EPI0')
    o('s_waitcnt vmcnt(0) lgkmcnt(0)'); o('s_barrier'); o('s_branch K2_ROUND')
    o.label('K2_OVF')
    o('s_movk_i32 s51, 512'); o('s_waitcnt vmcnt(0) lgkmcnt(0)'); o('s_barrier'); o('s_branch K2_ROUND')
    o.label('K2_EPI0')
    o('s_waitcnt lgkmcnt(0)')
    for x in epi_loads(): o(x)
    o.label('K2_EPI')
    cyc(o,12,1); stamp(o,9,'2')
    o('s_nop 9')
    o(f's_mov_b32 s46, {f2u(-LN2)}'); o(f's_mov_b32 s47, {f2u(-LOG2E)}')
    for i in range(32): o(f'v_mul_f32 v{AGG+i}, s46, v{AGG+i}')
    for i in range(16): o(f'v_cvt_pk_bf16_f32 v{AGG+i}, v{AGG+2*i}, v{AGG+2*i+1}')
    o('v_cmp_gt_u32 vcc, 25, v35'); o('v_lshlrev_b32 v2, 7, v35'); o('v_lshl_add_u32 v2, v36, 6, v2'); o('v_mov_b32 v3, 0x7ffffff0')
    o('v_cndmask_b32 v2, v3, v2, vcc')
    o('s_waitcnt vmcnt(0)')
    stamp(o,10,'2')
    for mt in range(2):
        for ks in range(8):
            b=XA+4*ks if ks<4 else AGG+4*(ks-4)
            o(mfma(P[mt],WS+8*ks+4*mt,b,'0' if ks==0 else None))
    o('s_nop 11')
    for mt in range(2):
        p=P[mt]
        for i in range(16): o(f'v_mul_f32 v{64+i}, s47, v{p+i}')
        for i in range(16): o(f'v_exp_f32 v{64+i}, v{64+i}')
        for i in range(16): o(f'v_add_f32 v{64+i}, 1.0, v{64+i}')
        for i in range(16): o(f'v_rcp_f32 v{64+i}, v{64+i}')
        for i in range(16): o(f'v_mul_f32 v{64+i}, v{p+i}, v{64+i}')
        for i in range(8): o(f'v_cvt_pk_bf16_f32 v{80+8*mt+i}, v{64+2*i}, v{65+2*i}')
        for q in range(2): o(f'buffer_store_dwordx4 {r(80+8*mt+4*q,4)}, v2, s[20:23], s14 offen offset:{32*mt+16*q}')
    o('s_waitcnt vmcnt(0)') if STAMP=='2' else None
    stamp(o,11,'2'); stamp_out(o,'2','s3','s12',8)
    o.label('K2_END')
    o('s_endpgm')
    return LDS
```

```python
import sys
from common import *
import k1,k2
o=Out()
l1=k1.gen_k1(o); l2=k2.gen_k2(o)
DIAG=os.environ.get('DIAG','')
extra=''; ed=''
if DIAG:
    def inj(lbl,slot):
        i=o.l.index(lbl+':')
        o.l[i+1:i+1]=['    '+x for x in ['s_memrealtime s[80:81]','s_load_dwordx2 s[82:83], s[0:1], 64','s_waitcnt lgkmcnt(0)','s_cmp_lg_u32 s2, 0',f's_cbranch_scc1 DG{slot}',
          's_add_u32 s84, s82, 0x2100000','s_addc_u32 s85, s83, 0','s_mov_b32 s86, 64','s_mov_b32 s87, 0x00020000','v_mov_b32 v60, s80',f'v_mov_b32 v61, {4*slot}','v_cmp_eq_u32 vcc, 0, v0','s_and_saveexec_b64 s[88:89], vcc',f's_cbranch_execz DH{slot}',
          'buffer_store_dword v60, v61, s[84:87], 0 offen']]+[f'DH{slot}:','    s_mov_b64 exec, s[88:89]',f'DG{slot}:']
    inj('k1_kernel',0); inj('k2_kernel',1)
    o.label('k3_kernel',kernel=True)
    for x in ['s_memrealtime s[10:11]','s_load_dwordx2 s[4:5], s[0:1], 64','s_waitcnt lgkmcnt(0)','s_add_u32 s4, s4, 0x2100000','s_addc_u32 s5, s5, 0','s_load_dwordx2 s[6:7], s[4:5], 0','s_waitcnt lgkmcnt(0)',
       {'0':'s_mov_b32 s8, 0','A':'s_sub_u32 s8, s7, s6','B':'s_sub_u32 s8, s10, s7'}[DIAG],'s_min_u32 s8, s8, 10000','s_mul_i32 s8, s8, 10']: o(x)
    o.label('K3L')
    for x in ['s_memrealtime s[12:13]','s_waitcnt lgkmcnt(0)','s_sub_u32 s12, s12, s10','s_cmp_lt_u32 s12, s8','s_cbranch_scc1 K3L','s_endpgm']: o(x)
    extra='; @launch kernel=k3_kernel grid=(1,1,1) block=(64,1,1) lds=0\n'; ed=desc('k3_kernel',8)
hdr=open('standalone__mpnn_edge_mlp__graph.s.ref').read().split('; Override launch')[0]
txt=hdr+f"""; @launch kernel=k1_kernel grid=({512 if XP else 253},1,1) block=(1024,1,1) lds={l1}
; @launch kernel=k2_kernel grid=(256,1,1) block=(512,1,1) lds={l2}
{extra}.amdgcn_target "amdgcn-amd-amdhsa--gfx950"
.text
"""+o.text()+'.section .rodata,"a"\n'+desc('k1_kernel',64)+desc('k2_kernel',256)+ed
out=sys.argv[1] if len(sys.argv)>1 else 'standalone__mpnn_edge_mlp__graph.s'
open(out,'w').write(txt)
```

```python
from common import *

def gen_k1(o):
    SMETA=0; SM2=12800; CNT=25600; STARTS=CNT+2048; RAW=STARTS+2048; LDS=RAW+M*32
    NI=M//32; KD=(NI+15)//16; REM=NI-16*(KD-1) if KD else 16
    o.label('k1_kernel', kernel=True)
    o('s_cmp_ge_u32 s2, 253'); o('s_cbranch_scc1 K1_PF')
    stamp_init(o,'1'); stamp(o,0,'1')
    o('s_load_dwordx4 s[4:7], s[0:1], 8')
    o('s_load_dwordx2 s[8:9], s[0:1], 24')
    o('s_load_dwordx4 s[12:15], s[0:1], 32')
    o('s_load_dwordx2 s[10:11], s[0:1], 64')
    o('v_lshrrev_b32 v1, 6, v0'); o('v_and_b32 v2, 63, v0')
    o('v_readfirstlane_b32 s3, v1')
    o('s_cmp_ge_u32 s2, 250'); o('s_cbranch_scc1 K1_FRAG')
    o('v_mov_b32 v6, 0'); o('v_lshlrev_b32 v7, 2, v0'); o('v_and_b32 v7, 0x7ff, v7')
    o(f'ds_write_b32 v7, v6 offset:{CNT}')
    o('s_mul_i32 s40, s2, 12800')
    o('s_mul_i32 s41, s2, 102400')
    o('v_lshlrev_b32 v3, 4, v0')
    o(f's_movk_i32 s42, {M//4}'); o('v_cmp_le_u32 s[52:53], s42, v0')
    o('s_movk_i32 s42, 800')
    o('v_cmp_gt_u32 vcc, s42, v0')
    o('v_mov_b32 v5, 0x7ffffff0')
    o('v_mov_b32 v35, 1024')
    o('v_cndmask_b32 v4, v5, v3, vcc')
    o('v_cndmask_b32 v35, v6, v35, s[52:53]')
    o('s_waitcnt lgkmcnt(0)')
    srd(o,24,'s8','s9',E*4)
    o('buffer_load_dwordx4 v[8:11], v4, s[24:27], s40 offen nt')
    srd(o,20,'s6','s7',E*4)
    o('buffer_load_dwordx4 v[12:15], v4, s[20:23], s40 offen nt')
    o('s_barrier')
    srd(o,16,'s4','s5',E*32)
    o('s_lshl_b32 s43, s3, 10')
    for k in range(KD):
        if k==KD-1 and REM<16:
            o(f's_cmp_ge_u32 s3, {REM}'); o('s_cbranch_scc1 K1_DMADONE')
        o(f's_add_u32 m0, s43, {RAW+k*16384}')
        o(f's_add_u32 s44, s41, {k*16384}')
        o('buffer_load_dwordx4 v3, s[16:19], s44 offen nt lds')
    o.label('K1_DMADONE')
    stamp(o,1,'1')
    srd_off(o,28,'s10','s11',WS_E2,E*32); srd_off(o,32,'s10','s11',WS_M2,E*8); srd_off(o,36,'s10','s11',WS_T,250*2048)
    o('s_lshl_b32 s54, s40, 1'); o('s_add_u32 s55, s54, 12800')
    o('s_and_saveexec_b64 s[46:47], vcc')
    o('s_cbranch_execz K1_NOHIST')
    o('s_mov_b32 s45, 83887'); o('s_movk_i32 s48, 200'); o('v_mov_b32 v6, 1')
    o(f's_waitcnt vmcnt({KD if REM==16 else KD-1})')
    stamp(o,2,'1')
    for i in range(4):
        d=8+i
        o(f'v_mul_u32_u24 v{16+i}, s45, v{d}'); o(f'v_lshrrev_b32 v{16+i}, 24, v{16+i}')
        o(f'v_mul_u32_u24 v{20+i}, s48, v{16+i}'); o(f'v_sub_u32 v{20+i}, v{d}, v{20+i}')
        o(f'v_lshl_add_u32 v{16+i}, v{16+i}, 2, v35')
        o(f'ds_add_rtn_u32 v{28+i}, v{16+i}, v6 offset:{CNT}')
    for i in range(4):
        s_=12+i
        o(f'v_mul_u32_u24 v{24+i}, 41, v{20+i}'); o(f'v_lshrrev_b32 v{24+i}, 10, v{24+i}')
        o(f'v_mul_u32_u24 v{8+i}, 25, v{24+i}'); o(f'v_sub_u32 v{8+i}, v{20+i}, v{8+i}')
        o(f'v_lshlrev_b32 v{8+i}, 19, v{8+i}')
        o(f'v_lshl_or_b32 v{8+i}, v{24+i}, 24, v{8+i}')
        o(f'v_or_b32 v{56+2*i}, v{s_}, v{8+i}')
    o.label('K1_NOHIST')
    o('s_mov_b64 exec, s[46:47]')
    o('v_lshlrev_b32 v32, 5, v2')
    o('s_waitcnt lgkmcnt(0)'); o('s_barrier')
    stamp(o,3,'1')
    o(f'ds_read_b128 v[36:39], v32 offset:{CNT}'); o(f'ds_read_b128 v[40:43], v32 offset:{CNT+16}')
    o(f's_movk_i32 s49, {STARTS}')
    o('v_add_u32 v33, s49, v32')
    o('s_waitcnt lgkmcnt(0)')
    o('v_add3_u32 v53, v36, v37, v38'); o('v_add3_u32 v54, v39, v40, v41'); o('v_add3_u32 v53, v53, v42, v43'); o('v_add_u32 v53, v53, v54')
    o('v_mov_b32 v44, v53')
    wave_scan(o,'v44')
    o('v_sub_u32 v44, v44, v53')
    for i in range(7): o(f'v_add_u32 v{45+i}, v{44+i}, v{36+i}')
    o('ds_write_b128 v33, v[44:47]'); o('ds_write_b128 v33, v[48:51] offset:16')
    o('s_cmp_lg_u32 s3, 15'); o('s_cbranch_scc1 K1_NOT')
    for i in range(8): o(f'v_lshl_or_b32 v{36+i}, v{36+i}, 16, v{44+i}')
    o('s_lshl_b32 s50, s2, 11')
    o(f'buffer_store_dwordx4 v[36:39], v32, s[36:39], s50 offen {STP}'); o(f'buffer_store_dwordx4 v[40:43], v32, s[36:39], s50 offen offset:16 {STP}')
    o.label('K1_NOT')
    o('s_and_saveexec_b64 s[46:47], vcc')
    o('s_cbranch_execz K1_NOPOS')
    for i in range(4):
        o(f'v_add_u32 v{16+i}, s49, v{16+i}'); o(f'ds_read_b32 v{20+i}, v{16+i}')
    o('v_lshlrev_b32 v34, 7, v0'); o('v_add_u32 v34, s41, v34')
    o('s_waitcnt lgkmcnt(0)')
    for i in range(4):
        o(f'v_add_lshl_u32 v{20+i}, v{20+i}, v{28+i}, 3')
        o(f'v_add_u32 v{57+2*i}, {32*i}, v34')
        o(f'ds_write_b64 v{20+i}, v[{56+2*i}:{57+2*i}]')
    o.label('K1_NOPOS')
    o('s_mov_b64 exec, s[46:47]')
    o('s_waitcnt lgkmcnt(0)'); o('s_barrier')
    stamp(o,4,'1')
    o(f'ds_read_b128 v[8:11], v3 offset:{SMETA}'); o(f'ds_read_b128 v[12:15], v3 offset:{SM2}')
    o('v_and_b32 v6, 0x3fe, v0'); o('v_lshlrev_b32 v6, 2, v6')
    o('v_and_b32 v7, 1, v0'); o('v_lshlrev_b32 v7, 4, v7'); o(f's_sub_u32 s45, {RAW}, s41'); o('v_add_u32 v7, s45, v7')
    for k in range(KD): o(f'ds_read_b32 v{16+k}, v6 offset:{4+k*4096}')
    o(f's_waitcnt lgkmcnt({KD})')
    LATE=int(os.environ.get('LATE','1'))
    def mst():
        o(f'buffer_store_dwordx4 v[8:11], v4, s[32:35], s54 offen {STP}')
        o(f'buffer_store_dwordx4 v[12:15], v4, s[32:35], s55 offen {STP}')
    if not LATE: mst()
    if KD:
        o(f's_waitcnt vmcnt({0 if LATE else 2}) lgkmcnt(0)'); o('s_barrier')
    stamp(o,5,'1')
    for k in range(KD):
        o(f'v_add_u32 v{16+k}, v{16+k}, v7')
        o(f'ds_read_b128 v[{24+4*k}:{27+4*k}], v{16+k}')
    if LATE: mst()
    for k in range(KD):
        if k==KD-1 and REM<16:
            o(f's_cmp_ge_u32 s3, {REM}'); o('s_cbranch_scc1 K1_FIN')
        o(f's_add_u32 s44, s41, {k*16384}')
        o(f's_waitcnt lgkmcnt({KD-1-k})')
        o(f'buffer_store_dwordx4 v[{24+4*k}:{27+4*k}], v3, s[28:31], s44 offen {STP}')
    o.label('K1_FIN')
    stamp(o,6,'1')
    o('s_waitcnt vmcnt(0)') if STAMP=='1' else None
    stamp(o,7,'1'); stamp_out(o,'1','s2','s3',16)
    o('s_endpgm')
    o.label('K1_FRAG')
    o('s_sub_u32 s16, s2, 250'); o('s_lshl_b32 s16, s16, 4'); o('s_add_u32 s16, s16, s3')
    o('s_cmp_ge_u32 s16, 36'); o('s_cbranch_scc1 K1_END')
    o('s_waitcnt lgkmcnt(0)')
    srd_off(o,28,'s10','s11',WS_WF,36*1024)
    o('v_and_b32 v3, 31, v2'); o('v_lshrrev_b32 v4, 5, v2')
    o('s_and_b32 s17, s16, 1')
    o('s_lshr_b32 s18, s16, 1')
    o(f's_mov_b32 s19, {f2u(-LOG2E)}')
    o('s_movk_i32 s20, 1024'); o('s_movk_i32 s21, 512')
    o('s_cmp_ge_u32 s16, 20'); o('s_cbranch_scc1 K1_FU')
    srd(o,24,'s12','s13',144*128)
    o('s_lshl_b32 s22, s18, 4')
    o('s_cmp_ge_u32 s18, 4'); o('s_cselect_b32 s22, 128, s22')
    o('s_sub_u32 s23, s18, 6'); o('s_lshl_b32 s23, s23, 4'); o('s_add_u32 s23, s23, 64')
    o('s_cmp_ge_u32 s18, 6'); o('s_cselect_b32 s22, s23, s22'); o('s_cselect_b32 s19, 1.0, s19')
    o('s_lshl_b32 s23, s17, 5'); o('v_add_u32 v5, s23, v3')
    o('s_branch K1_FGO')
    o.label('K1_FU')
    srd(o,24,'s14','s15',128*128)
    o('s_mov_b32 s19, 1.0')
    o('s_sub_u32 s22, s18, 10')
    o('s_cmp_ge_u32 s22, 4'); o('s_cselect_b32 s20, 512, s20'); o('s_cselect_b32 s21, 1024, s21')
    o('s_lshl_b32 s22, s22, 4')
    o('v_bfe_u32 v5, v3, 2, 1'); o('v_lshlrev_b32 v5, 5, v5')
    o('v_lshrrev_b32 v6, 3, v3'); o('v_lshl_add_u32 v5, v6, 2, v5')
    o('v_and_b32 v6, 3, v3'); o('v_add_u32 v5, v5, v6')
    o('s_lshl_b32 s23, s17, 4'); o('v_add_u32 v5, s23, v5')
    o.label('K1_FGO')
    o('s_lshl_b32 s22, s22, 7')
    o('v_lshlrev_b32 v5, 1, v5'); o('v_mul_u32_u24 v6, s20, v4'); o('v_add3_u32 v5, v5, v6, s22')
    o('v_add_u32 v6, s21, v5')
    for j in range(8): o(f'buffer_load_ushort v{8+j}, v{5 if j<4 else 6}, s[24:27], 0 offen offset:{(j&3)*128}')
    o('s_waitcnt vmcnt(0)')
    for j in range(8):
        o(f'v_lshlrev_b32 v{8+j}, 16, v{8+j}'); o(f'v_mul_f32 v{8+j}, s19, v{8+j}')
    for j in range(4): o(f'v_cvt_pk_bf16_f32 v{16+j}, v{8+2*j}, v{9+2*j}')
    o('s_cmp_lg_u32 s18, 5'); o('s_cbranch_scc1 K1_FST')
    for j in range(4):
        o(f'v_lshlrev_b32 v20, 16, v{16+j}'); o(f'v_and_b32 v21, 0xffff0000, v{16+j}')
        o(f'v_sub_f32 v20, v{8+2*j}, v20'); o(f'v_sub_f32 v21, v{9+2*j}, v21')
        o(f'v_cvt_pk_bf16_f32 v{16+j}, v20, v21')
    o.label('K1_FST')
    o('v_lshlrev_b32 v7, 4, v2'); o('s_lshl_b32 s16, s16, 10')
    o('buffer_store_dwordx4 v[16:19], v7, s[28:31], s16 offen')
    o('s_endpgm')
    o.label('K1_PF')
    if XP:
        o('s_sub_u32 s4, s2, 256'); o('s_cmp_ge_u32 s4, 256'); o('s_cbranch_scc1 K1_END')
        o('s_load_dwordx2 s[6:7], s[0:1], 0'); o('s_lshr_b32 s4, s4, 3'); o(f's_mul_i32 s4, s4, {XP*16384}'); o('v_lshlrev_b32 v3, 4, v0')
        o('s_waitcnt lgkmcnt(0)'); srd(o,8,'s6','s7',N*128)
        for k in range(XP): o(f'buffer_load_dwordx4 v[4:7], v3, s[8:11], s4 offen'); o('s_add_u32 s4, s4, 16384')
    o.label('K1_END')
    o('s_endpgm')
    return LDS
```

```python
from common import *
CNT=0; TOT=64; LUT1=128; SRC=2240; DL=10432; EL=14528; XS=30912; EB=XS+65536
PD=int(os.environ.get('PD','5')); CAPS=int(os.environ.get('CAPS','1536')); PS=(CAPS+511)//512; ND=CAPS//256; NP=PD+PS
LDS=EB+CAPS*32
WS,WE,Q,AGG,P=128,160,176,192,(224,240)
XA=96; EBUF=(112,64); OHA=116; OHT=56; TMP=40
cXg=(2,3,4,13); cXr=(5,6,7,8); pSRC=9; pEL=10; pDL=11; pD4=12; cL2=14; cL1=15
vBase,vCnt,vG0=16,17,18
vD4=19; vEL=20; vDL=21; vS=22; aT=24; aX=28; aE=(68,69); aL=70; cH=71
vDMA=(124,125,126,127,32,33,34,39)
def r(a,n): return f'v[{a}:{a+n-1}]'
def mfma(d,a,b,c=None): return f'v_mfma_f32_32x32x16_bf16 {r(d,16)}, {r(a,4)}, {r(b,4)}, {r(d,16) if c is None else c}'

WELO=int(os.environ.get('WELO','0')); ELP=os.environ.get('ELP',''); BAL=int(os.environ.get('BAL','1'))
NX=int(os.environ.get('NX','4')); PRIO=int(os.environ.get('PRIO','16')); PRIOA=int(os.environ.get('PRIOA','0'))
EDP=os.environ.get('EDP','nt')
DROP=os.environ.get('DROP','').split(',')
def pre_x(nt): return [mfma(P[nt],XA+4*s,WS+8*s+4*nt,'0' if s==0 else None) for s in range(4)]
def pre_r(nt,b):
    d=P[nt]; l=[mfma(d,OHA+4*s,Q+8*s+4*nt) for s in range(2)]+[mfma(d,EBUF[b],WE+4*nt)]
    if WELO: l.append(mfma(d,EBUF[b],WE+8+4*nt))
    return l
def aggm(nt): return [mfma(AGG+16*nt,P[nt]+4*s,OHT+4*s) for s in range(2)]
def xaddr(): return [f'v_mad_u32_u16 v{aX+j}, v{vS+j//2}, s60, v{cXg[j]} op_sel:[{j%2},0,0,0]' for j in range(4)]
def xdma(b): return [f's_add_u32 m0, s44, {4096*b}','s_nop 0']+[f'buffer_load_dwordx4 v{aX+j}, s[24:27], 0 offen offset:{1024*j} lds' for j in range(4)]
def xreads(b): return [f'ds_read_b128 {r(XA+4*s,4)}, v{cXr[s]} offset:{4096*b}' for s in range(4)]
def sread(off,v=None): return f'ds_read_b64 {r(v or vS,2)}, v{pSRC} offset:{SRC+64*off}'
def elread(off,v=None): return f'ds_read_b32 v{v or vEL}, v{pEL} offset:{EL+128*off}'
def eaddr(b): return [f'v_add_u32 v{aE[b]}, v{vEL}, v{cH}']
def eload(b): return [f'buffer_load_dwordx4 {r(EBUF[b],4)}, v{aE[b]}, s[36:39], 0 offen {EDP}']
def efix(b):
    if not ND: return []
    return [f'v_cmp_gt_i32 vcc, 0, v{aE[b]}', f'v_xor_b32 v{aL}, 0x80000000, v{aE[b]}', 's_mov_b64 exec, vcc', f'ds_read_b128 {r(EBUF[b],4)}, v{aL}', 's_mov_b64 exec, -1']
def oaddr(): return [f'v_add_u32 v{vDL}, v{vDL}, v{cL2}']
def oreads(): return [f'ds_read2_b64 {r(OHA+4*s,4)}, v{vDL} offset0:{132*s} offset1:{132*s+66}' for s in range(2)]
def taddr(): return [f'v_add_u32_sdwa v{aT+q}, v{vD4}, v{cL1} dst_sel:DWORD dst_unused:UNUSED_PAD src0_sel:BYTE_{q} src1_sel:DWORD' for q in range(4)]
def treads(): return [f'ds_read_b64_tr_b16 {r(OHT+2*q,2)}, v{aT+q}' for q in range(4)]
def dma(k,v): return [f's_add_u32 m0, s57, {8192*k}', 's_nop 0', f'buffer_load_dwordx4 v{v}, s[28:31], 0 offen {ELP} lds']
def silu(p):
    l=[f'v_exp_f32 v{TMP+i}, v{p+i}' for i in range(16)]
    l+=[f'v_pk_add_f32 {r(TMP+i,2)}, {r(TMP+i,2)}, 1.0 op_sel_hi:[1,0]' for i in range(0,16,2)]
    l+=[f'v_rcp_f32 v{TMP+i}, v{TMP+i}' for i in range(16)]
    l+=[f'v_pk_mul_f32 {r(TMP+i,2)}, {r(p+i,2)}, {r(TMP+i,2)}' for i in range(0,16,2)]
    l+=[f'v_cvt_pk_bf16_f32 v{p+i}, v{TMP+2*i}, v{TMP+2*i+1}' for i in range(8)]
    return l
def weave(o0,main,side):
    def o(x):
        if x.endswith(':'): o0.label(x[:-1]); return
        for d in DROP:
            if d and x.startswith(d): return
        o0(x)
    for i in range(len(main)+1):
        for x in side.get(i,[]): o(x)
        if i<len(main): o(main[i])
class Side(dict):
    def add(s,p,x): s.setdefault(p,[]).extend(x if isinstance(x,list) else [x])
uid=[0]
def phaseA(o,u,vm,dmas,first=False,ramp=False):
    S=Side(); nb=1-u
    S.add(0,[f'ds_read_b32 v{vD4}, v{pD4} offset:{DL+32*u}', sread(u+2 if ramp else u+3), elread(u+2), f'ds_read_u8 v{vDL}, v{pDL} offset:{DL+32*(u+1)}'])
    if PRIO: S.add(PRIOA,'s_setprio 1')
    if not first: S.add(1,aggm(1)[1])
    for p,x in zip((4,7,10,13),pre_x(1)): S.add(p,x)
    S.add(14,['s_waitcnt lgkmcnt(0)']+taddr())
    S.add(16,f's_waitcnt vmcnt({vm})')
    for i,x in enumerate(xreads(nb)+treads()): S.add(16+i,x)
    for p,x in zip((24,27,30,33),pre_r(1,u)): S.add(p,x)
    S.add(35,eaddr(u)+oaddr()+xaddr())
    S.add(36,eload(u))
    S.add(37,['s_waitcnt lgkmcnt(0)']+oreads())
    for i,(k,v) in enumerate(dmas): S.add(38+i,dma(k,v))
    x=xdma(u if ramp else nb); S.add(42,x[0])
    if ramp: S.add(48,sread(u+3))
    for i in range(4): S.add(43+i,x[2+i])
    S.add(54,aggm(0)[0])
    weave(o,silu(P[0]),S)
def phaseB(o,u,vm,inc,barchk,last=None,ramp=False):
    S=Side(); nb=1-u
    S.add(2,aggm(0)[1])
    if False:
        uid[0]+=1; L=f'K2_NB{uid[0]}'
        S.add(3,['s_sub_u32 s56, s56, 1','s_cmp_lg_u32 s56, 0',f's_cbranch_scc1 {L}','s_waitcnt vmcnt(9)','s_barrier',L+':'])
    if last is None:
        S.add(14 if ND else 30,[f's_waitcnt vmcnt({vm})']+efix(nb))
        S.add(27,'s_waitcnt lgkmcnt(0)')
        for p,x in zip((5,8,11,24,27,30,33,36),pre_x(0)+pre_r(0,nb)): S.add(p,x)
        if inc: S.add(13,[f'v_add_u32 v{pSRC}, 128, v{pSRC}',f'v_add_u32 v{pEL}, 256, v{pEL}',f'v_add_u32 v{pDL}, 64, v{pDL}',f'v_add_u32 v{pD4}, 64, v{pD4}'])
        if ramp: S.add(38,xaddr()); S.add(44,xdma(nb))
    else:
        S.add(4,last)
    if PRIO: S.add(PRIO,'s_setprio 0')
    S.add(54,aggm(1)[0])
    weave(o,silu(P[1]),S)

def gen_k2(o):
    def qblock():
        for nt in range(2):
            for s in range(4): o(mfma(P[nt],XA+4*s,AGG+8*s+4*nt,'0' if s==0 else None))
        o(f's_mov_b32 s46, {f2u(-LOG2E)}')
        o('s_nop 11')
        for nt in range(2):
            for i in range(16): o(f'v_mul_f32 v{P[nt]+i}, s46, v{P[nt]+i}')
            for s in range(2):
                for i in range(4): o(f'v_cvt_pk_bf16_f32 v{Q+8*s+4*nt+i}, v{P[nt]+8*s+2*i}, v{P[nt]+8*s+2*i+1}')
        for i in range(32): o(f'v_mov_b32 v{AGG+i}, 0')
    def xgload():
        o('s_mul_i32 s14, s3, 200'); o('s_mul_i32 s15, s58, 25'); o('s_add_u32 s14, s14, s15'); o('s_lshl_b32 s14, s14, 7')
        for s in range(4): o(f'buffer_load_dwordx4 {r(XA+4*s,4)}, v37, s[16:19], s14 offen offset:{32*s}')
    o.label('k2_kernel', kernel=True)
    o('s_and_b32 s3, s2, 7'); o('s_lshl_b32 s3, s3, 5'); o('s_lshr_b32 s4, s2, 3'); o('s_add_u32 s3, s3, s4')
    o('s_cmp_ge_u32 s2, 256'); o('s_cbranch_scc1 K2_END')
    o('s_cmp_ge_u32 s3, 250'); o('s_cbranch_scc1 K2_END')
    stamp_init(o,'2'); stamp(o,0,'2')
    o('s_load_dwordx2 s[4:5], s[0:1], 0'); o('s_load_dwordx2 s[8:9], s[0:1], 8'); o('s_load_dwordx2 s[6:7], s[0:1], 48'); o('s_load_dwordx2 s[10:11], s[0:1], 64')
    o('v_lshrrev_b32 v32, 6, v0'); o('v_and_b32 v1, 63, v0'); o('v_readfirstlane_b32 s12, v32')
    o('v_and_b32 v33, 255, v0' if ND else 'v_lshrrev_b32 v33, 1, v0'); o('v_lshlrev_b32 v34, 11, v33')
    o('s_lshl_b32 s13, s3, 2'); o(f's_cmp_lt_u32 s12, {4 if ND else 8}'); o('s_cselect_b32 s15, 1024, 0'); o('s_add_u32 s13, s13, s15')
    o('v_and_b32 v35, 31, v1'); o('v_lshrrev_b32 v36, 5, v1')
    o('v_lshlrev_b32 v37, 7, v35'); o('v_lshl_add_u32 v37, v36, 4, v37')
    o('v_cmp_gt_u32 vcc, 25, v35'); o('v_mov_b32 v38, 0x7ffffff0'); o('s_nop 0'); o('v_cndmask_b32 v37, v38, v37, vcc')
    o('v_lshlrev_b32 v38, 4, v1')
    o('s_waitcnt lgkmcnt(0)')
    srd_off(o,64,'s10','s11',WS_T,250*2048)
    o('buffer_load_dword v39, v34, s[64:67], s13 offen')
    srd(o,16,'s4','s5',N*128); srd(o,20,'s6','s7',N*128)
    srd_off(o,28,'s10','s11',WS_E2,E*32); srd_off(o,32,'s10','s11',WS_M2,E*8); srd_off(o,40,'s10','s11',WS_WF,36*1024)
    o('s_lshl_b32 s46, s12, 10'); o(f's_add_u32 s57, s46, {EB}')
    for k in range(3):
        if k==2: o('s_cmp_ge_u32 s12, 4'); o('s_cbranch_scc1 K2_WD')
        o(f's_add_u32 m0, s46, {XS+16384+8192*k}'); o(f's_add_u32 s45, s46, {8192*k}')
        o('buffer_load_dwordx4 v38, s[40:43], s45 offen lds')
    o.label('K2_WD')
    if BAL!=1: o('s_mov_b32 s58, s12'); xgload()
    srd(o,36,'s8','s9',E*32)
    o('s_sub_u32 s24, s4, 4096'); o('s_subb_u32 s25, s5, 0'); o(f's_mov_b32 s26, {N*128+4096}'); o('s_mov_b32 s27, 0x00020000')
    o('s_movk_i32 s60, 128')
    o('v_and_b32 v40, 7, v1'); o('v_lshrrev_b32 v41, 4, v1'); o('v_xor_b32 v40, v40, v41'); o('v_lshlrev_b32 v40, 4, v40'); o('v_xor_b32 v41, 64, v40')
    for j in range(4): o(f'v_add_u32 v{cXg[j]}, {4096-1024*j}, v{40+j%2}')
    o('s_lshl_b32 s44, s12, 13'); o(f's_add_u32 s44, s44, {XS}')
    o('v_bfe_u32 v41, v1, 1, 3'); o('v_xor_b32 v41, v41, v36'); o('v_lshlrev_b32 v41, 4, v41')
    o('v_lshlrev_b32 v40, 7, v35'); o('v_add_u32 v40, s44, v40')
    for s in range(4):
        o(f'v_xor_b32 v42, {32*s}, v41'); o(f'v_add_u32 v{cXr[s]}, v40, v42')
    o(f'v_lshlrev_b32 v{cH}, 4, v36')
    o(f'v_mul_u32_u24 v{cL2}, 264, v36'); o(f'v_add_u32 v{cL2}, {LUT1}, v{cL2}')
    o('v_bfe_u32 v40, v1, 4, 1'); o('v_and_b32 v41, 3, v1'); o('v_lshl_add_u32 v40, v40, 2, v41')
    o(f'v_mul_u32_u24 v{cL1}, 264, v40'); o(f'v_add_u32 v{cL1}, {LUT1}, v{cL1}')
    o('v_bfe_u32 v40, v0, 5, 3')
    o('v_lshlrev_b32 v41, 2, v40'); o('v_sub_u32 v41, v35, v41')
    o('v_cmp_gt_u32 vcc, 4, v41')
    o('v_mov_b32 v42, 0x3f80'); o('v_mov_b32 v43, 0'); o('v_cndmask_b32 v42, v43, v42, vcc')
    o('v_lshlrev_b32 v41, 4, v41'); o('v_lshlrev_b64 v[42:43], v41, v[42:43]')
    o('v_mul_u32_u24 v44, 264, v40'); o('v_lshl_add_u32 v44, v35, 3, v44')
    o(f'ds_write_b64 v44, v[42:43] offset:{LUT1}')
    o('v_mov_b32 v44, 0'); o('v_mov_b32 v45, 0'); o(f'ds_write_b64 v44, v[44:45] offset:{TOT}')
    o('s_mov_b32 s50, 0'); o('s_mov_b32 s59, 0'); o(f's_movk_i32 s51, {PD*512}'); o(f's_movk_i32 s61, {CAPS}'); o('s_mov_b32 s52, 1')
    o.label('K2_ROUND')
    o('v_lshlrev_b32 v40, 4, v0'); o('v_lshlrev_b32 v41, 3, v0')
    for i in range(4): o(f'v_mov_b32 v{44+i}, -1'); o(f'v_mov_b32 v{48+i}, 0'); o(f'v_mov_b32 v{52+i}, 0x03ffffff')
    o('v_mov_b32 v42, 0xf8f8f8f8'); o('v_mov_b32 v43, 0xf8f8f8f8')
    o(f'ds_write_b128 v40, v[44:47] offset:{SRC}'); o(f'ds_write_b64 v41, v[42:43] offset:{DL}')
    for a in (EL,EL+8192,XS,XS+8192): o(f'ds_write_b128 v40, v[52:55] offset:{a}')
    for i in range(4): o(f'ds_write_b128 v48, v[48:51] offset:{CNT+16*i}')
    o(f's_waitcnt vmcnt({0 if BAL==1 else 4}) lgkmcnt(0)'); o('s_barrier')
    o('s_cmp_eq_u32 s52, 0'); o('s_cbranch_scc1 K2_NOSCAN')
    stamp(o,1,'2')
    o(f'v_lshrrev_b32 v{vCnt}, 16, v39'); o('v_and_b32 v39, 0xffff, v39')
    o('s_movk_i32 s46, 3200'); o(f'v_mad_u32_u24 v{vG0}, v33, s46, v39')
    if ND: o(f'v_mov_b32 v41, v{vCnt}')
    else: o('v_and_b32 v40, 1, v0'); o('v_sub_u32 v40, 1, v40'); o(f'v_mul_u32_u24 v41, v40, v{vCnt}')
    wave_scan(o,'v41')
    o(f's_and_b32 s47, s12, {4 if ND else 0}'); o('v_readlane_b32 s46, v41, 63')
    o('s_mov_b64 exec, 1'); o('v_mov_b32 v43, s47'); o('v_mov_b32 v42, s46')
    o(f'ds_add_rtn_u32 v42, v43, v42 offset:{TOT}')
    o('s_waitcnt lgkmcnt(0)'); o('v_readfirstlane_b32 s46, v42'); o('s_mov_b64 exec, -1')
    o(f'v_sub_u32 v{vBase}, v41, v{vCnt}'); o(f'v_add_u32 v{vBase}, s46, v{vBase}')
    o.label('K2_NOSCAN')
    o(f's_cmp_lt_u32 s12, {4 if ND else 8}'); o('s_cselect_b32 s46, s50, s59'); o('s_cselect_b32 s47, s51, s61'); o(f's_cselect_b32 s48, 0, {PD*2048}')
    o(f'v_sub_u32 v40, s46, v{vBase}')
    o('v_add_u32 v41, s47, v40'); o(f'v_min_i32 v41, v41, v{vCnt}')
    o('v_max_i32 v42, 0, v40')
    if not ND: o('v_and_b32 v43, 1, v0'); o('v_add_u32 v42, v42, v43')
    o('v_sub_u32 v43, v42, v40'); o('v_lshl_add_u32 v43, v43, 2, s48')
    o(f'v_add_u32 v42, v42, v{vG0}'); o(f'v_add_u32 v41, v41, v{vG0}')
    o.label('K2_GL')
    st=1 if ND else 2
    for i in range(8):
        o('v_cmpx_lt_i32 vcc, v42, v41'); o(f'ds_write_b32 v43, v42 offset:{XS+4*st*i}'); o(f'v_add_u32 v42, {st}, v42')
    o(f'v_add_u32 v43, {32*st}, v43'); o('s_cbranch_execnz K2_GL')
    o.label('K2_GD')
    o('s_mov_b64 exec, -1')
    o('s_waitcnt lgkmcnt(0)'); o('s_barrier')
    stamp(o,2,'2')
    G,MT,GR,RK,CA=44,72,88,224,232
    o('v_lshlrev_b32 v40, 2, v0'); o('v_mov_b32 v41, 0')
    for k in range(NP): o(f'ds_read_b32 v{G+k}, v40 offset:{XS+2048*k}')
    o(f'ds_read_b64 v[54:55], v41 offset:{TOT}')
    o('v_and_b32 v42, 0x1fe, v0'); o('v_lshlrev_b32 v42, 1, v42')
    o('v_and_b32 v43, 1, v0'); o('v_lshlrev_b32 v43, 4, v43')
    o('s_waitcnt lgkmcnt(0)')
    dv=list(vDMA)
    for k in range(ND): o(f'ds_read_b32 v{dv[k]}, v42 offset:{XS+PD*2048+1024*k}')
    order=sorted(range(NP),key=lambda k:((k+0.5)*512/max(1,3200-M) if k<PD else (k-PD+0.5)*512/max(1,M)))
    if os.environ.get('ORD','S')=='S': order=list(range(PD,NP))+list(range(PD))
    for k in order:
        o(f'v_lshlrev_b32 v{G+k}, 3, v{G+k}')
        o(f'buffer_load_dwordx2 {r(MT+2*k,2)}, v{G+k}, s[32:35], 0 offen' if k<PD else f'buffer_load_dword v{MT+2*k}, v{G+k}, s[32:35], 0 offen')
    o('v_readfirstlane_b32 s53, v54'); o('v_readfirstlane_b32 s62, v55')
    o('s_waitcnt lgkmcnt(0)')
    for k in range(ND): o(f'v_lshl_add_u32 v{dv[k]}, v{dv[k]}, 5, v43')
    D1=min(ND,int(os.environ.get('D1','2')))
    for k in range(D1):
        for x in dma(k,dv[k]): o(x)
    o('s_sub_i32 s54, s53, s50'); o('s_min_i32 s54, s54, s51'); o('s_sub_i32 s63, s62, s59'); o('s_min_i32 s63, s63, s61')
    stamp(o,3,'2')
    o('s_cmp_eq_u32 s52, 0'); o('s_cbranch_scc1 K2_NOW')
    o(f'v_add_u32 v44, {XS+16384}, v38')
    for i in range(20): o(f'ds_read_b128 {r(WS+4*i if i<12 else AGG+4*(i-12),4)}, v44 offset:{1024*i}')
    o.label('K2_NOW')
    o('v_mov_b32 v41, 1')
    for k in range(NP):
        kk=k if k<PD else k-PD
        o(f'v_add_u32 v40, {512*kk}, v0')
        o(f'v_cmp_gt_i32 s[{64+2*k}:{65+2*k}], {"s54" if k<PD else "s63"}, v40')
        if k>=PD: o('v_lshlrev_b32 v40, 5, v40'); o(f'v_add_u32 v{MT+2*k+1}, {hex(0x80000000+EB)}, v40')
    for i,k in enumerate(order):
        o(f's_waitcnt vmcnt({NP+D1-1-i})')
        o(f'v_lshrrev_b32 v{GR+k}, 24, v{MT+2*k}'); o(f'v_lshlrev_b32 v{CA+k}, 2, v{GR+k}')
        o(f's_mov_b64 exec, s[{64+2*k}:{65+2*k}]')
        o(f'ds_add_rtn_u32 v{RK+k}, v{CA+k}, v41 offset:{CNT}')
        o('s_mov_b64 exec, -1')
    o('s_movk_i32 s46, 512')
    stamp(o,4,'2')
    def lw(k):
        o(f'v_cmp_gt_u32 vcc, s46, v{RK+k}')
        o(f'v_lshl_add_u32 v{RK+k}, v{GR+k}, 9, v{RK+k}'); o(f'v_lshlrev_b32 v{GR+k}, 1, v{RK+k}'); o(f'v_lshlrev_b32 v{CA+k}, 2, v{RK+k}')
        o(f's_and_b64 exec, vcc, s[{64+2*k}:{65+2*k}]')
        o(f'ds_write_b16 v{GR+k}, v{MT+2*k} offset:{SRC}')
        o(f'ds_write_b32 v{CA+k}, v{MT+2*k+1} offset:{EL}')
        o(f'ds_write_b8_d16_hi v{RK+k}, v{MT+2*k} offset:{DL}')
        o('s_mov_b64 exec, -1')
    for i,k in enumerate(order):
        o(f's_waitcnt lgkmcnt({min(15,NP-1-i+3*i)})'); lw(k)
    for k in range(D1,ND):
        for x in dma(k,dv[k]): o(x)
    o('v_and_b32 v40, 7, v1'); o('v_lshlrev_b32 v40, 2, v40')
    o('v_lshrrev_b32 v52, 3, v1'); o('v_lshlrev_b32 v52, 2, v52')
    o('s_waitcnt lgkmcnt(0)'); o('s_barrier')
    stamp(o,5,'2')
    o(f'ds_read_b32 v41, v40 offset:{CNT}'); o(f'ds_read_b32 v53, v52 offset:{CNT}')
    o('s_waitcnt lgkmcnt(0)')
    o('s_cmp_eq_u32 s52, 0'); o('s_cbranch_scc1 K2_NOSEL')
    if BAL:
        o('v_lshl_add_u32 v53, v53, 5, v52'); o('v_lshl_add_u32 v54, v41, 5, v40')
        o('v_cmp_gt_u32 vcc, v54, v53')
        o('s_sub_u32 s47, 11, s12'); o('s_cmp_lt_u32 s12, 4'); o('s_cselect_b32 s47, s12, s47')
        o('s_mov_b32 s58, 0')
        for gi in range(1,8):
            o(f's_bfe_u32 s48, {"vcc_lo" if gi<4 else "vcc_hi"}, {hex((8<<16)|(8*(gi%4)))}'); o('s_bcnt1_i32_b32 s48, s48')
            o('s_cmp_eq_u32 s48, s47'); o(f's_cselect_b32 s58, {gi}, s58')
    o.label('K2_NOSEL')
    o('s_lshl_b32 s47, s58, 9')
    o('v_add_u32 v40, s47, v52'); o(f'v_lshlrev_b32 v{pSRC}, 1, v40')
    o('v_and_b32 v40, 7, v1'); o('v_bfe_u32 v53, v1, 3, 2'); o('v_lshl_add_u32 v40, v40, 2, v53')
    o(f'v_add_u32 v{pDL}, s47, v40'); o(f'v_lshlrev_b32 v{pEL}, 2, v{pDL}')
    o('v_bfe_u32 v53, v1, 2, 2'); o('v_lshl_add_u32 v40, v36, 2, v53')
    o('v_lshlrev_b32 v40, 2, v40'); o(f'v_add_u32 v{pD4}, s47, v40')
    o('v_cmp_lt_u32 vcc, s46, v41'); o('v_readlane_b32 s55, v41, s58')
    stamp(o,6,'2')
    o(sread(0)); o(elread(0)); o(sread(1,42)); o(elread(1,44)); o(f'ds_read_u8 v{vDL}, v{pDL} offset:{DL}')
    o('s_add_u32 s55, s55, 31'); o('s_lshr_b32 s55, s55, 5')
    o('s_mov_b64 s[48:49], vcc')
    o('s_waitcnt lgkmcnt(0)')
    for x in xaddr()+xdma(0): o(x)
    if BAL: xgload()
    for x in eaddr(0)+eload(0): o(x)
    o(f's_waitcnt vmcnt({9 if BAL else 5})'); o('s_barrier')
    o(f'v_mov_b32 v{vS}, v42'); o(f'v_mov_b32 v{vS+1}, v43'); o(f'v_mov_b32 v{vEL}, v44')
    for x in xaddr()+eaddr(1)+oaddr()+oreads()+[sread(2)]: o(x)
    o('s_cmp_eq_u32 s52, 0'); o('s_cbranch_scc1 K2_NOQ')
    o('s_mov_b32 s52, 0')
    o(f's_waitcnt vmcnt({1 if BAL else 5})')
    qblock()
    o.label('K2_NOQ')
    o('s_cmp_lg_u64 s[48:49], 0'); o('s_cbranch_scc1 K2_OVF')
    stamp(o,7,'2')
    o('s_add_u32 s50, s50, s51'); o('s_add_u32 s59, s59, s61')
    o('s_cmp_lt_u32 s50, s53'); o('s_cselect_b32 s45, 1, 0'); o('s_cmp_lt_u32 s59, s62'); o('s_cselect_b32 s45, 1, s45')
    o('s_cmp_eq_u32 s55, 0'); o('s_cbranch_scc1 K2_LOOPEND')
    RAMP=int(os.environ.get('RAMP','2'))
    if RAMP==0:
        for x in xdma(1)+eload(1): o(x)
    o(f's_waitcnt vmcnt({0 if RAMP else 5})')
    for x in xreads(0)+efix(0): o(x)
    if RAMP:
        for x in xdma(1)+eload(1): o(x)
    for i in range(4): o(f'v_mov_b32 v{OHT+4+i}, 0'); o(f'v_mov_b32 v{P[1]+4+i}, 0')
    o('s_waitcnt lgkmcnt(0)')
    for x in pre_x(0)+pre_r(0,0): o(x)
    if RAMP<2:
        for x in xaddr()+xdma(0): o(x)
    o('s_nop 7')
    stamp(o,8,'2'); cyc(o,12,0)
    if RAMP==2:
        phaseA(o,0,0,[],first=True,ramp=True)
        o('s_sub_u32 s55, s55, 1'); o('s_cmp_eq_u32 s55, 0'); o('s_cbranch_scc1 K2_LAST')
        phaseB(o,0,5,0,True,ramp=True)
        o('s_waitcnt vmcnt(4)'); o('s_branch K2_LOOP1')
    o.label('K2_LOOP')
    for u in range(2):
        if u: o.label('K2_LOOP1')
        phaseA(o,u,4,[])
        o('s_sub_u32 s55, s55, 1'); o('s_cmp_eq_u32 s55, 0'); o('s_cbranch_scc1 K2_LAST')
        phaseB(o,u,9,u,True)
    o('s_branch K2_LOOP')
    def epi_loads():
        l=[f'buffer_load_dwordx4 {r(XA+4*s,4)}, v37, s[16:19], s14 offen offset:{32*s}' for s in range(4)]
        for i in range(16):
            if i%4==0: l.append(f's_mov_b32 s47, {20480+i*1024}')
            l.append(f'buffer_load_dwordx4 {r(WS+4*i,4)}, v38, s[40:43], s47 offen offset:{(i%4)*1024}')
        return l
    o.label('K2_LAST')
    phaseB(o,0,0,0,True,last=['s_waitcnt lgkmcnt(0)','s_cmp_lg_u32 s45, 0','s_cbranch_scc1 K2_NOEL']+epi_loads()+['K2_NOEL:'])
    o('s_nop 1'); o(aggm(1)[1])
    o('s_cmp_eq_u32 s45, 0'); o('s_cbranch_scc1 K2_EPI')
    o.label('K2_LOOPEND')
    o('s_cmp_eq_u32 s45, 0'); o('s_cbranch_scc1 K2_EPI0')
    o('s_waitcnt vmcnt(0) lgkmcnt(0)'); o('s_barrier'); o('s_branch K2_ROUND')
    o.label('K2_OVF')
    o('s_movk_i32 s51, 256'); o(f's_movk_i32 s61, {256 if ND else 0}'); o('s_waitcnt vmcnt(0) lgkmcnt(0)'); o('s_barrier'); o('s_branch K2_ROUND')
    o.label('K2_EPI0')
    o('s_waitcnt lgkmcnt(0)')
    for x in epi_loads(): o(x)
    o.label('K2_EPI')
    cyc(o,12,1); stamp(o,9,'2')
    o('s_nop 9')
    o(f's_mov_b32 s46, {f2u(-LN2)}'); o(f's_mov_b32 s47, {f2u(-LOG2E)}')
    for i in range(32): o(f'v_mul_f32 v{AGG+i}, s46, v{AGG+i}')
    for i in range(16): o(f'v_cvt_pk_bf16_f32 v{AGG+i}, v{AGG+2*i}, v{AGG+2*i+1}')
    o('v_cmp_gt_u32 vcc, 25, v35'); o('v_lshlrev_b32 v2, 7, v35'); o('v_lshl_add_u32 v2, v36, 6, v2'); o('v_mov_b32 v3, 0x7ffffff0')
    o('v_cndmask_b32 v2, v3, v2, vcc')
    o('s_waitcnt vmcnt(0)')
    stamp(o,10,'2')
    for mt in range(2):
        for ks in range(8):
            b=XA+4*ks if ks<4 else AGG+4*(ks-4)
            o(mfma(P[mt],WS+8*ks+4*mt,b,'0' if ks==0 else None))
    o('s_nop 11')
    for mt in range(2):
        p=P[mt]
        for i in range(16): o(f'v_mul_f32 v{64+i}, s47, v{p+i}')
        for i in range(16): o(f'v_exp_f32 v{64+i}, v{64+i}')
        for i in range(16): o(f'v_add_f32 v{64+i}, 1.0, v{64+i}')
        for i in range(16): o(f'v_rcp_f32 v{64+i}, v{64+i}')
        for i in range(16): o(f'v_mul_f32 v{64+i}, v{p+i}, v{64+i}')
        for i in range(8): o(f'v_cvt_pk_bf16_f32 v{80+8*mt+i}, v{64+2*i}, v{65+2*i}')
        for q in range(2): o(f'buffer_store_dwordx4 {r(80+8*mt+4*q,4)}, v2, s[20:23], s14 offen offset:{32*mt+16*q}')
    o('s_waitcnt vmcnt(0)') if STAMP=='2' else None
    stamp(o,11,'2'); stamp_out(o,'2','s3','s12',8)
    o.label('K2_END')
    o('s_endpgm')
    return LDS
```

```python
from common import *

def gen_k1(o):
    SMETA=0; SM2=12800; CNT=25600; STARTS=CNT+2048; RAW=STARTS+2048; LDS=RAW+M*32
    NI=M//32; KD=(NI+15)//16; REM=NI-16*(KD-1) if KD else 16
    o.label('k1_kernel', kernel=True)
    o('s_cmp_ge_u32 s2, 253'); o('s_cbranch_scc1 K1_PF')
    stamp_init(o,'1'); stamp(o,0,'1')
    o('s_load_dwordx4 s[4:7], s[0:1], 8')
    o('s_load_dwordx2 s[8:9], s[0:1], 24')
    o('s_load_dwordx4 s[12:15], s[0:1], 32')
    o('s_load_dwordx2 s[10:11], s[0:1], 64')
    o('v_lshrrev_b32 v1, 6, v0'); o('v_and_b32 v2, 63, v0')
    o('v_readfirstlane_b32 s3, v1')
    o('s_cmp_ge_u32 s2, 250'); o('s_cbranch_scc1 K1_FRAG')
    o('v_mov_b32 v6, 0'); o('v_lshlrev_b32 v7, 2, v0'); o('v_and_b32 v7, 0x7ff, v7')
    o(f'ds_write_b32 v7, v6 offset:{CNT}')
    o('s_mul_i32 s40, s2, 12800')
    o('s_mul_i32 s41, s2, 102400')
    o('v_lshlrev_b32 v3, 4, v0')
    o(f's_movk_i32 s42, {M//4}'); o('v_cmp_le_u32 s[52:53], s42, v0')
    o('s_movk_i32 s42, 800')
    o('v_cmp_gt_u32 vcc, s42, v0')
    o('v_mov_b32 v5, 0x7ffffff0')
    o('v_mov_b32 v35, 1024')
    o('v_cndmask_b32 v4, v5, v3, vcc')
    o('v_cndmask_b32 v35, v6, v35, s[52:53]')
    o('s_waitcnt lgkmcnt(0)')
    srd(o,24,'s8','s9',E*4)
    o('buffer_load_dwordx4 v[8:11], v4, s[24:27], s40 offen nt')
    srd(o,20,'s6','s7',E*4)
    o('buffer_load_dwordx4 v[12:15], v4, s[20:23], s40 offen nt')
    BL=int(os.environ.get('BL','0'))
    if not BL: o('s_barrier')
    srd(o,16,'s4','s5',E*32)
    o('s_lshl_b32 s43, s3, 10')
    for k in range(KD):
        if k==KD-1 and REM<16:
            o(f's_cmp_ge_u32 s3, {REM}'); o('s_cbranch_scc1 K1_DMADONE')
        o(f's_add_u32 m0, s43, {RAW+k*16384}')
        o(f's_add_u32 s44, s41, {k*16384}')
        o('buffer_load_dwordx4 v3, s[16:19], s44 offen nt lds')
    o.label('K1_DMADONE')
    if BL: o('s_barrier')
    stamp(o,1,'1')
    srd_off(o,28,'s10','s11',WS_E2,E*32); srd_off(o,32,'s10','s11',WS_M2,E*8); srd_off(o,36,'s10','s11',WS_T,250*2048)
    o('s_lshl_b32 s54, s40, 1'); o('s_add_u32 s55, s54, 12800')
    o('s_and_saveexec_b64 s[46:47], vcc')
    o('s_cbranch_execz K1_NOHIST')
    o('s_mov_b32 s45, 83887'); o('s_movk_i32 s48, 200'); o('v_mov_b32 v6, 1')
    o(f's_waitcnt vmcnt({KD if REM==16 else KD-1})')
    stamp(o,2,'1')
    for i in range(4):
        d=8+i
        o(f'v_mul_u32_u24 v{16+i}, s45, v{d}'); o(f'v_lshrrev_b32 v{16+i}, 24, v{16+i}')
        o(f'v_mul_u32_u24 v{20+i}, s48, v{16+i}'); o(f'v_sub_u32 v{20+i}, v{d}, v{20+i}')
        o(f'v_lshl_add_u32 v{16+i}, v{16+i}, 2, v35')
        o(f'ds_add_rtn_u32 v{28+i}, v{16+i}, v6 offset:{CNT}')
    for i in range(4):
        s_=12+i
        o(f'v_mul_u32_u24 v{24+i}, 41, v{20+i}'); o(f'v_lshrrev_b32 v{24+i}, 10, v{24+i}')
        o(f'v_mul_u32_u24 v{8+i}, 25, v{24+i}'); o(f'v_sub_u32 v{8+i}, v{20+i}, v{8+i}')
        o(f'v_lshlrev_b32 v{8+i}, 19, v{8+i}')
        o(f'v_lshl_or_b32 v{8+i}, v{24+i}, 24, v{8+i}')
        o(f'v_or_b32 v{56+2*i}, v{s_}, v{8+i}')
    o.label('K1_NOHIST')
    o('s_mov_b64 exec, s[46:47]')
    o('v_lshlrev_b32 v32, 5, v2')
    o('s_waitcnt lgkmcnt(0)'); o('s_barrier')
    stamp(o,3,'1')
    o(f'ds_read_b128 v[36:39], v32 offset:{CNT}'); o(f'ds_read_b128 v[40:43], v32 offset:{CNT+16}')
    o(f's_movk_i32 s49, {STARTS}')
    o('v_add_u32 v33, s49, v32')
    o('s_waitcnt lgkmcnt(0)')
    o('v_add3_u32 v53, v36, v37, v38'); o('v_add3_u32 v54, v39, v40, v41'); o('v_add3_u32 v53, v53, v42, v43'); o('v_add_u32 v53, v53, v54')
    o('v_mov_b32 v44, v53')
    wave_scan(o,'v44')
    o('v_sub_u32 v44, v44, v53')
    for i in range(7): o(f'v_add_u32 v{45+i}, v{44+i}, v{36+i}')
    o('ds_write_b128 v33, v[44:47]'); o('ds_write_b128 v33, v[48:51] offset:16')
    o('s_cmp_lg_u32 s3, 15'); o('s_cbranch_scc1 K1_NOT')
    for i in range(8): o(f'v_lshl_or_b32 v{36+i}, v{36+i}, 16, v{44+i}')
    o('s_lshl_b32 s50, s2, 11')
    o(f'buffer_store_dwordx4 v[36:39], v32, s[36:39], s50 offen {STP}'); o(f'buffer_store_dwordx4 v[40:43], v32, s[36:39], s50 offen offset:16 {STP}')
    o.label('K1_NOT')
    o('s_and_saveexec_b64 s[46:47], vcc')
    o('s_cbranch_execz K1_NOPOS')
    for i in range(4):
        o(f'v_add_u32 v{16+i}, s49, v{16+i}'); o(f'ds_read_b32 v{20+i}, v{16+i}')
    o('v_lshlrev_b32 v34, 7, v0'); o('v_add_u32 v34, s41, v34')
    o('s_waitcnt lgkmcnt(0)')
    for i in range(4):
        o(f'v_add_lshl_u32 v{20+i}, v{20+i}, v{28+i}, 3')
        o(f'v_add_u32 v{57+2*i}, {32*i}, v34')
        o(f'ds_write_b64 v{20+i}, v[{56+2*i}:{57+2*i}]')
    o.label('K1_NOPOS')
    o('s_mov_b64 exec, s[46:47]')
    o('s_waitcnt lgkmcnt(0)'); o('s_barrier')
    stamp(o,4,'1')
    o(f'ds_read_b128 v[8:11], v3 offset:{SMETA}'); o(f'ds_read_b128 v[12:15], v3 offset:{SM2}')
    o('v_and_b32 v6, 0x3fe, v0'); o('v_lshlrev_b32 v6, 2, v6')
    o('v_and_b32 v7, 1, v0'); o('v_lshlrev_b32 v7, 4, v7'); o(f's_sub_u32 s45, {RAW}, s41'); o('v_add_u32 v7, s45, v7')
    for k in range(KD): o(f'ds_read_b32 v{16+k}, v6 offset:{4+k*4096}')
    o(f's_waitcnt lgkmcnt({KD})')
    LATE=int(os.environ.get('LATE','0'))
    def mst():
        o(f'buffer_store_dwordx4 v[8:11], v4, s[32:35], s54 offen {STP}')
        o(f'buffer_store_dwordx4 v[12:15], v4, s[32:35], s55 offen {STP}')
    if not LATE: mst()
    if KD:
        o(f's_waitcnt vmcnt(0) lgkmcnt(0)'); o('s_barrier')
    stamp(o,5,'1')
    for k in range(KD):
        o(f'v_add_u32 v{16+k}, v{16+k}, v7')
        o(f'ds_read_b128 v[{24+4*k}:{27+4*k}], v{16+k}')
    if LATE: mst()
    for k in range(KD):
        if k==KD-1 and REM<16:
            o(f's_cmp_ge_u32 s3, {REM}'); o('s_cbranch_scc1 K1_FIN')
        o(f's_add_u32 s44, s41, {k*16384}')
        o(f's_waitcnt lgkmcnt({KD-1-k})')
        o(f'buffer_store_dwordx4 v[{24+4*k}:{27+4*k}], v3, s[28:31], s44 offen {STP}')
    o.label('K1_FIN')
    stamp(o,6,'1')
    o('s_waitcnt vmcnt(0)') if STAMP=='1' else None
    stamp(o,7,'1'); stamp_out(o,'1','s2','s3',16)
    o('s_endpgm')
    o.label('K1_FRAG')
    o('s_sub_u32 s16, s2, 250'); o('s_lshl_b32 s16, s16, 4'); o('s_add_u32 s16, s16, s3')
    o('s_cmp_ge_u32 s16, 36'); o('s_cbranch_scc1 K1_END')
    o('s_waitcnt lgkmcnt(0)')
    srd_off(o,28,'s10','s11',WS_WF,36*1024)
    o('v_and_b32 v3, 31, v2'); o('v_lshrrev_b32 v4, 5, v2')
    o('s_and_b32 s17, s16, 1')
    o('s_lshr_b32 s18, s16, 1')
    o(f's_mov_b32 s19, {f2u(-LOG2E)}')
    o('s_movk_i32 s20, 1024'); o('s_movk_i32 s21, 512')
    o('s_cmp_ge_u32 s16, 20'); o('s_cbranch_scc1 K1_FU')
    srd(o,24,'s12','s13',144*128)
    o('s_lshl_b32 s22, s18, 4')
    o('s_cmp_ge_u32 s18, 4'); o('s_cselect_b32 s22, 128, s22')
    o('s_sub_u32 s23, s18, 6'); o('s_lshl_b32 s23, s23, 4'); o('s_add_u32 s23, s23, 64')
    o('s_cmp_ge_u32 s18, 6'); o('s_cselect_b32 s22, s23, s22'); o('s_cselect_b32 s19, 1.0, s19')
    o('s_lshl_b32 s23, s17, 5'); o('v_add_u32 v5, s23, v3')
    o('s_branch K1_FGO')
    o.label('K1_FU')
    srd(o,24,'s14','s15',128*128)
    o('s_mov_b32 s19, 1.0')
    o('s_sub_u32 s22, s18, 10')
    o('s_cmp_ge_u32 s22, 4'); o('s_cselect_b32 s20, 512, s20'); o('s_cselect_b32 s21, 1024, s21')
    o('s_lshl_b32 s22, s22, 4')
    o('v_bfe_u32 v5, v3, 2, 1'); o('v_lshlrev_b32 v5, 5, v5')
    o('v_lshrrev_b32 v6, 3, v3'); o('v_lshl_add_u32 v5, v6, 2, v5')
    o('v_and_b32 v6, 3, v3'); o('v_add_u32 v5, v5, v6')
    o('s_lshl_b32 s23, s17, 4'); o('v_add_u32 v5, s23, v5')
    o.label('K1_FGO')
    o('s_lshl_b32 s22, s22, 7')
    o('v_lshlrev_b32 v5, 1, v5'); o('v_mul_u32_u24 v6, s20, v4'); o('v_add3_u32 v5, v5, v6, s22')
    o('v_add_u32 v6, s21, v5')
    for j in range(8): o(f'buffer_load_ushort v{8+j}, v{5 if j<4 else 6}, s[24:27], 0 offen offset:{(j&3)*128}')
    o('s_waitcnt vmcnt(0)')
    for j in range(8):
        o(f'v_lshlrev_b32 v{8+j}, 16, v{8+j}'); o(f'v_mul_f32 v{8+j}, s19, v{8+j}')
    for j in range(4): o(f'v_cvt_pk_bf16_f32 v{16+j}, v{8+2*j}, v{9+2*j}')
    o('s_cmp_lg_u32 s18, 5'); o('s_cbranch_scc1 K1_FST')
    for j in range(4):
        o(f'v_lshlrev_b32 v20, 16, v{16+j}'); o(f'v_and_b32 v21, 0xffff0000, v{16+j}')
        o(f'v_sub_f32 v20, v{8+2*j}, v20'); o(f'v_sub_f32 v21, v{9+2*j}, v21')
        o(f'v_cvt_pk_bf16_f32 v{16+j}, v20, v21')
    o.label('K1_FST')
    o('v_lshlrev_b32 v7, 4, v2'); o('s_lshl_b32 s16, s16, 10')
    o('buffer_store_dwordx4 v[16:19], v7, s[28:31], s16 offen')
    o('s_endpgm')
    o.label('K1_PF')
    if XP:
        o('s_sub_u32 s4, s2, 256'); o('s_cmp_ge_u32 s4, 256'); o('s_cbranch_scc1 K1_END')
        o('s_load_dwordx2 s[6:7], s[0:1], 0'); o('s_lshr_b32 s4, s4, 3'); o(f's_mul_i32 s4, s4, {XP*16384}'); o('v_lshlrev_b32 v3, 4, v0')
        o('s_waitcnt lgkmcnt(0)'); srd(o,8,'s6','s7',N*128)
        for k in range(XP): o(f'buffer_load_dwordx4 v[4:7], v3, s[8:11], s4 offen'); o('s_add_u32 s4, s4, 16384')
    o.label('K1_END')
    o('s_endpgm')
    return LDS
```

```python
from common import *
CNT=0; TOT=64; LUT1=128; SRC=2240; DL=10432; EL=14528; XS=30912; EB=XS+65536
PD=int(os.environ.get('PD','5')); CAPS=int(os.environ.get('CAPS','1280')); PS=(CAPS+511)//512; ND=CAPS//256; NP=PD+PS
LDS=EB+CAPS*32
WS,WE,Q,AGG,P=128,160,176,192,(224,240)
XA=96; EBUF=(112,64); OHA=116; OHT=56; TMP=40
cXg=(2,3,4,13); cXr=(5,6,7,8); pSRC=9; pEL=10; pDL=11; pD4=12; cL2=14; cL1=15
vBase,vCnt,vG0=16,17,18
vD4=19; vEL=20; vDL=21; vS=22; aT=24; aX=28; aE=(68,69); aL=70; cH=71
vDMA=(124,125,126,127,32,33,34,39)
uid=[0]
def r(a,n): return f'v[{a}:{a+n-1}]'
def mfma(d,a,b,c=None): return f'v_mfma_f32_32x32x16_bf16 {r(d,16)}, {r(a,4)}, {r(b,4)}, {r(d,16) if c is None else c}'

WELO=int(os.environ.get('WELO','0')); ELP=os.environ.get('ELP',''); BAL=int(os.environ.get('BAL','1'))
NX=int(os.environ.get('NX','4')); PRIO=int(os.environ.get('PRIO','16')); PRIOA=int(os.environ.get('PRIOA','0'))
EDP=os.environ.get('EDP','nt')
DROP=os.environ.get('DROP','').split(',')
def pre_x(nt): return [mfma(P[nt],XA+4*s,WS+8*s+4*nt,'0' if s==0 else None) for s in range(4)]
def pre_r(nt,b):
    d=P[nt]; l=[mfma(d,OHA+4*s,Q+8*s+4*nt) for s in range(2)]+[mfma(d,EBUF[b],WE+4*nt)]
    if WELO: l.append(mfma(d,EBUF[b],WE+8+4*nt))
    return l
def aggm(nt): return [mfma(AGG+16*nt,P[nt]+4*s,OHT+4*s) for s in range(2)]
def xaddr(): return [f'v_mad_u32_u16 v{aX+j}, v{vS+j//2}, s60, v{cXg[j]} op_sel:[{j%2},0,0,0]' for j in range(4)]
def xdma(b): return [f's_add_u32 m0, s44, {32768*b}','s_nop 0']+[f'buffer_load_dwordx4 v{aX+j}, s[24:27], 0 offen offset:{1024*j} lds' for j in range(4)]
def xreads(b): return [f'ds_read_b128 {r(XA+4*s,4)}, v{cXr[s]} offset:{32768*b}' for s in range(4)]
def sread(off,v=None): return f'ds_read_b64 {r(v or vS,2)}, v{pSRC} offset:{SRC+64*off}'
def elread(off,v=None): return f'ds_read_b32 v{v or vEL}, v{pEL} offset:{EL+128*off}'
EM=int(os.environ.get('EM','1')); XPOS=[int(x) for x in os.environ.get('XPOS','44,62,82,100').split(',')]
def eaddr(b): return [f'v_add_u32 v{aE[b]}, v{vEL}, v{cH}']+([f'v_cmp_gt_i32 s[{64+2*b}:{65+2*b}], 0, v{vEL}'] if ND else [])
def eload(b):
    ld=f'buffer_load_dwordx4 {r(EBUF[b],4)}, v{aE[b]}, s[36:39], 0 offen {EDP}'
    if not (ND and EM): return [ld]
    uid[0]+=1; L=f'K2_EL{uid[0]}'
    return [f's_not_b64 exec, s[{64+2*b}:{65+2*b}]',f's_cbranch_execz {L}',ld,L+':','s_mov_b64 exec, -1']
def efix(b):
    if not ND: return []
    return [f'v_xor_b32 v{aL}, 0x80000000, v{aE[b]}', f's_mov_b64 exec, s[{64+2*b}:{65+2*b}]', f'ds_read_b128 {r(EBUF[b],4)}, v{aL}', 's_mov_b64 exec, -1']
def oaddr(): return [f'v_add_u32 v{vDL}, v{vDL}, v{cL2}']
def oreads(): return [f'ds_read2_b64 {r(OHA+4*s,4)}, v{vDL} offset0:{132*s} offset1:{132*s+66}' for s in range(2)]
def taddr(): return [f'v_add_u32_sdwa v{aT+q}, v{vD4}, v{cL1} dst_sel:DWORD dst_unused:UNUSED_PAD src0_sel:BYTE_{q} src1_sel:DWORD' for q in range(4)]
def treads(): return [f'ds_read_b64_tr_b16 {r(OHT+2*q,2)}, v{aT+q}' for q in range(4)]
def dma(k,v): return [f's_add_u32 m0, s57, {8192*k}', 's_nop 0', f'buffer_load_dwordx4 v{v}, s[28:31], 0 offen {ELP} lds']
def silu(p):
    l=[f'v_exp_f32 v{TMP+i}, v{p+i}' for i in range(16)]
    l+=[f'v_pk_add_f32 {r(TMP+i,2)}, {r(TMP+i,2)}, 1.0 op_sel_hi:[1,0]' for i in range(0,16,2)]
    l+=[f'v_rcp_f32 v{TMP+i}, v{TMP+i}' for i in range(16)]
    l+=[f'v_pk_mul_f32 {r(TMP+i,2)}, {r(p+i,2)}, {r(TMP+i,2)}' for i in range(0,16,2)]
    l+=[f'v_cvt_pk_bf16_f32 v{p+i}, v{TMP+2*i}, v{TMP+2*i+1}' for i in range(8)]
    return l
def weave(o0,main,side):
    def o(x):
        if x.endswith(':'): o0.label(x[:-1]); return
        for d in DROP:
            if d and x.startswith(d.replace(';',',')): return
        o0(x)
    for i in range(len(main)+1):
        for x in side.get(i,[]): o(x)
        if i<len(main): o(main[i])
class Side(dict):
    def add(s,p,x): s.setdefault(p,[]).extend(x if isinstance(x,list) else [x])
def phaseA(o,u,vm,dmas,first=False,ramp=False):
    S=Side(); nb=1-u
    S.add(0,[f'ds_read_b32 v{vD4}, v{pD4} offset:{DL+32*u}', sread(u+2 if ramp else u+3), elread(u+2), f'ds_read_u8 v{vDL}, v{pDL} offset:{DL+32*(u+1)}'])
    if PRIO: S.add(PRIOA,'s_setprio 1')
    if not first: S.add(1,aggm(1)[1])
    for p,x in zip((4,7,10,13),pre_x(1)): S.add(p,x)
    S.add(14,['s_waitcnt lgkmcnt(0)']+taddr())
    S.add(16,f's_waitcnt vmcnt({vm})')
    for i,x in enumerate(xreads(nb)+treads()): S.add(16+i,x)
    for p,x in zip((24,27,30,33),pre_r(1,u)): S.add(p,x)
    S.add(35,eaddr(u)+oaddr()+xaddr())
    S.add(36,eload(u))
    S.add(37,['s_waitcnt lgkmcnt(0)']+oreads())
    for i,(k,v) in enumerate(dmas): S.add(38+i,dma(k,v))
    x=xdma(u if ramp else nb); S.add(42,x[0])
    if ramp: S.add(48,sread(u+3))
    for i in range(4):
        p=43+i if ramp else XPOS[i]
        if p<56: S.add(p,x[2+i])
    S.add(54,aggm(0)[0])
    weave(o,silu(P[0]),S)
def phaseB(o,u,vm,inc,barchk,last=None,ramp=False):
    S=Side(); nb=1-u
    S.add(2,aggm(0)[1])
    if False:
        uid[0]+=1; L=f'K2_NB{uid[0]}'
        S.add(3,['s_sub_u32 s56, s56, 1','s_cmp_lg_u32 s56, 0',f's_cbranch_scc1 {L}','s_waitcnt vmcnt(9)','s_barrier',L+':'])
    if last is None:
        S.add(14,efix(nb))
        for i in range(4):
            if XPOS[i]>=56 and not ramp: S.add(XPOS[i]-56,xdma(nb)[2+i])
        S.add(27,'s_waitcnt lgkmcnt(0)')
        for p,x in zip((5,8,11,24,27,30,33,36),pre_x(0)+pre_r(0,nb)): S.add(p,x)
        if inc: S.add(13,[f'v_add_u32 v{pSRC}, 128, v{pSRC}',f'v_add_u32 v{pEL}, 256, v{pEL}',f'v_add_u32 v{pDL}, 64, v{pDL}',f'v_add_u32 v{pD4}, 64, v{pD4}'])
        if ramp: S.add(38,xaddr()); S.add(44,xdma(nb))
    else:
        S.add(4,last)
    if PRIO: S.add(PRIO,'s_setprio 0')
    S.add(54,aggm(1)[0])
    weave(o,silu(P[1]),S)

def gen_k2(o):
    def qblock():
        for nt in range(2):
            for s in range(4): o(mfma(P[nt],XA+4*s,AGG+8*s+4*nt,'0' if s==0 else None))
        o(f's_mov_b32 s46, {f2u(-LOG2E)}')
        o('s_nop 11')
        for nt in range(2):
            for i in range(16): o(f'v_mul_f32 v{P[nt]+i}, s46, v{P[nt]+i}')
            for s in range(2):
                for i in range(4): o(f'v_cvt_pk_bf16_f32 v{Q+8*s+4*nt+i}, v{P[nt]+8*s+2*i}, v{P[nt]+8*s+2*i+1}')
        for i in range(32): o(f'v_mov_b32 v{AGG+i}, 0')
    def xgload():
        o('s_mul_i32 s14, s3, 200'); o('s_mul_i32 s15, s58, 25'); o('s_add_u32 s14, s14, s15'); o('s_lshl_b32 s14, s14, 7')
        for s in range(4): o(f'buffer_load_dwordx4 {r(XA+4*s,4)}, v37, s[16:19], s14 offen offset:{32*s}')
    o.label('k2_kernel', kernel=True)
    o('s_and_b32 s3, s2, 7'); o('s_lshl_b32 s3, s3, 5'); o('s_lshr_b32 s4, s2, 3'); o('s_add_u32 s3, s3, s4')
    o('s_cmp_ge_u32 s2, 256'); o('s_cbranch_scc1 K2_END')
    o('s_cmp_ge_u32 s3, 250'); o('s_cbranch_scc1 K2_END')
    stamp_init(o,'2'); stamp(o,0,'2')
    o('s_load_dwordx2 s[4:5], s[0:1], 0'); o('s_load_dwordx2 s[8:9], s[0:1], 8'); o('s_load_dwordx2 s[6:7], s[0:1], 48'); o('s_load_dwordx2 s[10:11], s[0:1], 64')
    o('v_lshrrev_b32 v32, 6, v0'); o('v_and_b32 v1, 63, v0'); o('v_readfirstlane_b32 s12, v32')
    o('v_and_b32 v33, 255, v0' if ND else 'v_lshrrev_b32 v33, 1, v0'); o('v_lshlrev_b32 v34, 11, v33')
    o('s_lshl_b32 s13, s3, 2'); o(f's_cmp_lt_u32 s12, {4 if ND else 8}'); o('s_cselect_b32 s15, 1024, 0'); o('s_add_u32 s13, s13, s15')
    o('v_and_b32 v35, 31, v1'); o('v_lshrrev_b32 v36, 5, v1')
    o('v_lshlrev_b32 v37, 7, v35'); o('v_lshl_add_u32 v37, v36, 4, v37')
    o('v_cmp_gt_u32 vcc, 25, v35'); o('v_mov_b32 v38, 0x7ffffff0'); o('s_nop 0'); o('v_cndmask_b32 v37, v38, v37, vcc')
    o('v_lshlrev_b32 v38, 4, v1')
    o('s_waitcnt lgkmcnt(0)')
    srd_off(o,64,'s10','s11',WS_T,250*2048)
    o('buffer_load_dword v39, v34, s[64:67], s13 offen')
    srd(o,16,'s4','s5',N*128); srd(o,20,'s6','s7',N*128)
    srd_off(o,28,'s10','s11',WS_E2,E*32); srd_off(o,32,'s10','s11',WS_M2,E*8); srd_off(o,40,'s10','s11',WS_WF,36*1024)
    o('s_lshl_b32 s46, s12, 10'); o(f's_add_u32 s57, s46, {EB}')
    for k in range(3):
        if k==2: o('s_cmp_ge_u32 s12, 4'); o('s_cbranch_scc1 K2_WD')
        o(f's_add_u32 m0, s46, {XS+16384+8192*k}'); o(f's_add_u32 s45, s46, {8192*k}')
        o('buffer_load_dwordx4 v38, s[40:43], s45 offen lds')
    o.label('K2_WD')
    srd(o,36,'s8','s9',E*32)
    o('s_sub_u32 s24, s4, 4096'); o('s_subb_u32 s25, s5, 0'); o(f's_mov_b32 s26, {N*128+4096}'); o('s_mov_b32 s27, 0x00020000')
    o('s_movk_i32 s60, 128')
    o('v_and_b32 v40, 7, v1'); o('v_lshrrev_b32 v41, 4, v1'); o('v_xor_b32 v40, v40, v41'); o('v_lshlrev_b32 v40, 4, v40'); o('v_xor_b32 v41, 64, v40')
    for j in range(4): o(f'v_add_u32 v{cXg[j]}, {4096-1024*j}, v{40+j%2}')
    o('s_lshl_b32 s44, s12, 12'); o(f's_add_u32 s44, s44, {XS}')
    o('v_bfe_u32 v41, v1, 1, 3'); o('v_xor_b32 v41, v41, v36'); o('v_lshlrev_b32 v41, 4, v41')
    o('v_lshlrev_b32 v40, 7, v35'); o('v_add_u32 v40, s44, v40')
    for s in range(4):
        o(f'v_xor_b32 v42, {32*s}, v41'); o(f'v_add_u32 v{cXr[s]}, v40, v42')
    o(f'v_lshlrev_b32 v{cH}, 4, v36')
    o(f'v_mul_u32_u24 v{cL2}, 264, v36'); o(f'v_add_u32 v{cL2}, {LUT1}, v{cL2}')
    o('v_bfe_u32 v40, v1, 4, 1'); o('v_and_b32 v41, 3, v1'); o('v_lshl_add_u32 v40, v40, 2, v41')
    o(f'v_mul_u32_u24 v{cL1}, 264, v40'); o(f'v_add_u32 v{cL1}, {LUT1}, v{cL1}')
    o('v_bfe_u32 v40, v0, 5, 3')
    o('v_lshlrev_b32 v41, 2, v40'); o('v_sub_u32 v41, v35, v41')
    o('v_cmp_gt_u32 vcc, 4, v41')
    o('v_mov_b32 v42, 0x3f80'); o('v_mov_b32 v43, 0'); o('v_cndmask_b32 v42, v43, v42, vcc')
    o('v_lshlrev_b32 v41, 4, v41'); o('v_lshlrev_b64 v[42:43], v41, v[42:43]')
    o('v_mul_u32_u24 v44, 264, v40'); o('v_lshl_add_u32 v44, v35, 3, v44')
    o(f'ds_write_b64 v44, v[42:43] offset:{LUT1}')
    o('v_mov_b32 v44, 0'); o('v_mov_b32 v45, 0'); o(f'ds_write_b64 v44, v[44:45] offset:{TOT}')
    o('s_mov_b32 s50, 0'); o('s_mov_b32 s59, 0'); o(f's_movk_i32 s51, {PD*512}'); o(f's_movk_i32 s61, {CAPS}'); o('s_mov_b32 s52, 1')
    o.label('K2_ROUND')
    o('v_lshlrev_b32 v40, 4, v0'); o('v_lshlrev_b32 v41, 3, v0')
    for i in range(4): o(f'v_mov_b32 v{44+i}, -1'); o(f'v_mov_b32 v{48+i}, 0'); o(f'v_mov_b32 v{52+i}, 0x03ffffff')
    o('v_mov_b32 v42, 0xf8f8f8f8'); o('v_mov_b32 v43, 0xf8f8f8f8')
    o(f'ds_write_b128 v40, v[44:47] offset:{SRC}'); o(f'ds_write_b64 v41, v[42:43] offset:{DL}')
    for a in (EL,EL+8192,XS,XS+8192): o(f'ds_write_b128 v40, v[52:55] offset:{a}')
    for i in range(4): o(f'ds_write_b128 v48, v[48:51] offset:{CNT+16*i}')
    o(f's_waitcnt vmcnt(0) lgkmcnt(0)'); o('s_barrier')
    o('s_cmp_eq_u32 s52, 0'); o('s_cbranch_scc1 K2_NOSCAN')
    stamp(o,1,'2')
    XR=XS+36864
    o('s_lshl_b32 s46, s12, 10'); o('s_mul_i32 s15, s3, 25600'); o('s_add_u32 s15, s15, s46'); o('v_add_u32 v40, s15, v38')
    for k in (3,0,1,2):
        if k==3: o('s_cmp_ge_u32 s12, 2'); o('s_cbranch_scc1 K2_XD')
        o(f's_add_u32 m0, s46, {XR+8192*k}'); o(f'v_add_u32 v41, {8192*k}, v40')
        o('buffer_load_dwordx4 v41, s[16:19], 0 offen lds')
        if k==3: o.label('K2_XD')
    o(f'v_lshrrev_b32 v{vCnt}, 16, v39'); o('v_and_b32 v39, 0xffff, v39')
    o('s_movk_i32 s46, 3200'); o(f'v_mad_u32_u24 v{vG0}, v33, s46, v39')
    if ND: o(f'v_mov_b32 v41, v{vCnt}')
    else: o('v_and_b32 v40, 1, v0'); o('v_sub_u32 v40, 1, v40'); o(f'v_mul_u32_u24 v41, v40, v{vCnt}')
    wave_scan(o,'v41')
    o(f's_and_b32 s47, s12, {4 if ND else 0}'); o('v_readlane_b32 s46, v41, 63')
    o('s_mov_b64 exec, 1'); o('v_mov_b32 v43, s47'); o('v_mov_b32 v42, s46')
    o(f'ds_add_rtn_u32 v42, v43, v42 offset:{TOT}')
    o('s_waitcnt lgkmcnt(0)'); o('v_readfirstlane_b32 s46, v42'); o('s_mov_b64 exec, -1')
    o(f'v_sub_u32 v{vBase}, v41, v{vCnt}'); o(f'v_add_u32 v{vBase}, s46, v{vBase}')
    o.label('K2_NOSCAN')
    o(f's_cmp_lt_u32 s12, {4 if ND else 8}'); o('s_cselect_b32 s46, s50, s59'); o('s_cselect_b32 s47, s51, s61'); o(f's_cselect_b32 s48, 0, {PD*2048}')
    o(f'v_sub_u32 v40, s46, v{vBase}')
    o('v_add_u32 v41, s47, v40'); o(f'v_min_i32 v41, v41, v{vCnt}')
    o('v_max_i32 v42, 0, v40')
    if not ND: o('v_and_b32 v43, 1, v0'); o('v_add_u32 v42, v42, v43')
    o('v_sub_u32 v43, v42, v40'); o('v_lshl_add_u32 v43, v43, 2, s48')
    o(f'v_add_u32 v42, v42, v{vG0}'); o(f'v_add_u32 v41, v41, v{vG0}')
    o.label('K2_GL')
    st=1 if ND else 2
    for i in range(8):
        o('v_cmpx_lt_i32 vcc, v42, v41'); o(f'ds_write_b32 v43, v42 offset:{XS+4*st*i}'); o(f'v_add_u32 v42, {st}, v42')
    o(f'v_add_u32 v43, {32*st}, v43'); o('s_cbranch_execnz K2_GL')
    o.label('K2_GD')
    o('s_mov_b64 exec, -1')
    o('s_waitcnt lgkmcnt(0)'); o('s_barrier')
    stamp(o,2,'2')
    G,MT,GR,RK,CA=44,72,88,224,232
    o('v_lshlrev_b32 v40, 2, v0'); o('v_mov_b32 v41, 0')
    for k in range(NP): o(f'ds_read_b32 v{G+k}, v40 offset:{XS+2048*k}')
    o(f'ds_read_b64 v[54:55], v41 offset:{TOT}')
    o('v_and_b32 v42, 0x1fe, v0'); o('v_lshlrev_b32 v42, 1, v42')
    o('v_and_b32 v43, 1, v0'); o('v_lshlrev_b32 v43, 4, v43')
    o('s_waitcnt lgkmcnt(0)')
    dv=list(vDMA)
    for k in range(ND): o(f'ds_read_b32 v{dv[k]}, v42 offset:{XS+PD*2048+1024*k}')
    order=sorted(range(NP),key=lambda k:((k+0.5)*512/max(1,3200-M) if k<PD else (k-PD+0.5)*512/max(1,M)))
    if os.environ.get('ORD','S')=='S': order=list(range(PD,NP))+list(range(PD))
    if os.environ.get('ORD','S')[0].isdigit(): order=[int(c) for c in os.environ['ORD']]
    for k in order:
        o(f'v_lshlrev_b32 v{G+k}, 3, v{G+k}')
        o(f'buffer_load_dwordx2 {r(MT+2*k,2)}, v{G+k}, s[32:35], 0 offen' if k<PD else f'buffer_load_dword v{MT+2*k}, v{G+k}, s[32:35], 0 offen')
    o('v_readfirstlane_b32 s53, v54'); o('v_readfirstlane_b32 s62, v55')
    o('s_waitcnt lgkmcnt(0)')
    for k in range(ND): o(f'v_lshl_add_u32 v{dv[k]}, v{dv[k]}, 5, v43')
    D1=min(ND,int(os.environ.get('D1','0')))
    for k in range(D1):
        for x in dma(k,dv[k]): o(x)
    o('s_sub_i32 s54, s53, s50'); o('s_min_i32 s54, s54, s51'); o('s_sub_i32 s63, s62, s59'); o('s_min_i32 s63, s63, s61')
    stamp(o,3,'2')
    o('s_cmp_eq_u32 s52, 0'); o('s_cbranch_scc1 K2_NOW')
    o(f'v_add_u32 v44, {XS+16384}, v38')
    for i in range(20): o(f'ds_read_b128 {r(WS+4*i if i<12 else AGG+4*(i-12),4)}, v44 offset:{1024*i}')
    o.label('K2_NOW')
    o('v_mov_b32 v41, 1')
    for k in range(NP):
        kk=k if k<PD else k-PD
        o(f'v_add_u32 v40, {512*kk}, v0')
        o(f'v_cmp_gt_i32 s[{64+2*k}:{65+2*k}], {"s54" if k<PD else "s63"}, v40')
        if k>=PD: o('v_lshlrev_b32 v40, 5, v40'); o(f'v_add_u32 v{MT+2*k+1}, {hex(0x80000000+EB)}, v40')
    for i,k in enumerate(order):
        o(f's_waitcnt vmcnt({NP+D1-1-i})')
        o(f'v_lshrrev_b32 v{GR+k}, 24, v{MT+2*k}'); o(f'v_lshlrev_b32 v{CA+k}, 2, v{GR+k}')
        o(f's_mov_b64 exec, s[{64+2*k}:{65+2*k}]')
        o(f'ds_add_rtn_u32 v{RK+k}, v{CA+k}, v41 offset:{CNT}')
        o('s_mov_b64 exec, -1')
    o('s_movk_i32 s46, 512')
    stamp(o,4,'2')
    def lw(k):
        o(f'v_cmp_gt_u32 vcc, s46, v{RK+k}')
        o(f'v_lshl_add_u32 v{RK+k}, v{GR+k}, 9, v{RK+k}'); o(f'v_lshlrev_b32 v{GR+k}, 1, v{RK+k}'); o(f'v_lshlrev_b32 v{CA+k}, 2, v{RK+k}')
        o(f's_and_b64 exec, vcc, s[{64+2*k}:{65+2*k}]')
        o(f'ds_write_b16 v{GR+k}, v{MT+2*k} offset:{SRC}')
        o(f'ds_write_b32 v{CA+k}, v{MT+2*k+1} offset:{EL}')
        o(f'ds_write_b8_d16_hi v{RK+k}, v{MT+2*k} offset:{DL}')
        o('s_mov_b64 exec, -1')
    for i,k in enumerate(order):
        o(f's_waitcnt lgkmcnt({min(15,NP-1-i+3*i)})'); lw(k)
    for k in range(D1,ND):
        for x in dma(k,dv[k]): o(x)
    o('v_and_b32 v40, 7, v1'); o('v_lshlrev_b32 v40, 2, v40')
    o('v_lshrrev_b32 v52, 3, v1'); o('v_lshlrev_b32 v52, 2, v52')
    o('s_waitcnt lgkmcnt(0)'); o('s_barrier')
    stamp(o,5,'2')
    o(f'ds_read_b32 v41, v40 offset:{CNT}'); o(f'ds_read_b32 v53, v52 offset:{CNT}')
    o('s_waitcnt lgkmcnt(0)')
    o('s_cmp_eq_u32 s52, 0'); o('s_cbranch_scc1 K2_NOSEL')
    if BAL:
        o('v_lshl_add_u32 v53, v53, 5, v52'); o('v_lshl_add_u32 v54, v41, 5, v40')
        o('v_cmp_gt_u32 vcc, v54, v53')
        o('s_sub_u32 s47, 11, s12'); o('s_cmp_lt_u32 s12, 4'); o('s_cselect_b32 s47, s12, s47')
        o('s_mov_b32 s58, 0')
        for gi in range(1,8):
            o(f's_bfe_u32 s48, {"vcc_lo" if gi<4 else "vcc_hi"}, {hex((8<<16)|(8*(gi%4)))}'); o('s_bcnt1_i32_b32 s48, s48')
            o('s_cmp_eq_u32 s48, s47'); o(f's_cselect_b32 s58, {gi}, s58')
    o('s_mul_i32 s14, s3, 200'); o('s_mul_i32 s15, s58, 25'); o('s_add_u32 s14, s14, s15'); o('s_lshl_b32 s14, s14, 7')
    o('s_lshl_b32 s15, s15, 7'); o(f's_add_u32 s15, s15, {XR}')
    o(f'v_lshl_add_u32 v53, v35, 7, v{cH}'); o('v_add_u32 v53, s15, v53')
    for s in range(4): o(f'ds_read_b128 {r(XA+4*s,4)}, v53 offset:{32*s}')
    o.label('K2_NOSEL')
    o('s_lshl_b32 s47, s58, 9')
    o('v_add_u32 v40, s47, v52'); o(f'v_lshlrev_b32 v{pSRC}, 1, v40')
    o('v_and_b32 v40, 7, v1'); o('v_bfe_u32 v53, v1, 3, 2'); o('v_lshl_add_u32 v40, v40, 2, v53')
    o(f'v_add_u32 v{pDL}, s47, v40'); o(f'v_lshlrev_b32 v{pEL}, 2, v{pDL}')
    o('v_bfe_u32 v53, v1, 2, 2'); o('v_lshl_add_u32 v40, v36, 2, v53')
    o('v_lshlrev_b32 v40, 2, v40'); o(f'v_add_u32 v{pD4}, s47, v40')
    o('v_cmp_lt_u32 vcc, s46, v41'); o('v_readlane_b32 s55, v41, s58')
    stamp(o,6,'2')
    o(sread(0)); o(elread(0)); o(sread(1,42)); o(elread(1,44)); o(f'ds_read_u8 v{vDL}, v{pDL} offset:{DL}')
    o('s_add_u32 s55, s55, 31'); o('s_lshr_b32 s55, s55, 5')
    o('s_mov_b64 s[48:49], vcc')
    o('s_waitcnt lgkmcnt(0)')
    for x in xaddr()+xdma(0): o(x)
    for x in eaddr(0)+[x for x in eload(0) if x.startswith('buffer')]: o(x)
    o(f'v_mov_b32 v{vS}, v42'); o(f'v_mov_b32 v{vS+1}, v43'); o(f'v_mov_b32 v{vEL}, v44')
    for x in xaddr()+eaddr(1)+oaddr()+oreads()+[sread(2)]: o(x)
    o('s_cmp_eq_u32 s52, 0'); o('s_cbranch_scc1 K2_NOQ')
    o('s_mov_b32 s52, 0')
    qblock()
    o.label('K2_NOQ')
    o('s_waitcnt vmcnt(5)'); o('s_barrier')
    o('s_cmp_lg_u64 s[48:49], 0'); o('s_cbranch_scc1 K2_OVF')
    stamp(o,7,'2')
    o('s_add_u32 s50, s50, s51'); o('s_add_u32 s59, s59, s61')
    o('s_cmp_lt_u32 s50, s53'); o('s_cselect_b32 s45, 1, 0'); o('s_cmp_lt_u32 s59, s62'); o('s_cselect_b32 s45, 1, s45')
    o('s_cmp_eq_u32 s55, 0'); o('s_cbranch_scc1 K2_LOOPEND')
    RAMP=int(os.environ.get('RAMP','2'))
    if RAMP==0:
        for x in xdma(1)+eload(1): o(x)
    o(f's_waitcnt vmcnt({0 if RAMP else 5})')
    for x in xreads(0)+efix(0): o(x)
    if RAMP: weave(o,xdma(1)+eload(1),{})
    for i in range(4): o(f'v_mov_b32 v{OHT+4+i}, 0'); o(f'v_mov_b32 v{P[1]+4+i}, 0')
    o('s_waitcnt lgkmcnt(0)')
    for x in pre_x(0)+pre_r(0,0): o(x)
    if RAMP<2:
        for x in xaddr()+xdma(0): o(x)
    o('s_nop 7')
    stamp(o,8,'2'); cyc(o,12,0)
    if RAMP==2:
        phaseA(o,0,0,[],first=True,ramp=True)
        o('s_sub_u32 s55, s55, 1'); o('s_cmp_eq_u32 s55, 0'); o('s_cbranch_scc1 K2_LAST')
        phaseB(o,0,5,0,True,ramp=True)
        o('s_waitcnt vmcnt(4)'); o('s_branch K2_LOOP1')
    o.label('K2_LOOP')
    for u in range(2):
        if u: o.label('K2_LOOP1')
        phaseA(o,u,4,[])
        o('s_sub_u32 s55, s55, 1'); o('s_cmp_eq_u32 s55, 0'); o('s_cbranch_scc1 K2_LAST')
        phaseB(o,u,9,u,True)
    o('s_branch K2_LOOP')
    def epi_loads():
        l=[f'buffer_load_dwordx4 {r(XA+4*s,4)}, v37, s[16:19], s14 offen offset:{32*s}' for s in range(4)]
        for i in range(16):
            if i%4==0: l.append(f's_mov_b32 s47, {20480+i*1024}')
            l.append(f'buffer_load_dwordx4 {r(WS+4*i,4)}, v38, s[40:43], s47 offen offset:{(i%4)*1024}')
        return l
    o.label('K2_LAST')
    phaseB(o,0,0,0,True,last=['s_waitcnt lgkmcnt(0)','s_cmp_lg_u32 s45, 0','s_cbranch_scc1 K2_NOEL']+epi_loads()+['K2_NOEL:'])
    o('s_nop 1'); o(aggm(1)[1])
    o('s_cmp_eq_u32 s45, 0'); o('s_cbranch_scc1 K2_EPI')
    o.label('K2_LOOPEND')
    o('s_cmp_eq_u32 s45, 0'); o('s_cbranch_scc1 K2_EPI0')
    o('s_waitcnt vmcnt(0) lgkmcnt(0)'); o('s_barrier'); o('s_branch K2_ROUND')
    o.label('K2_OVF')
    o('s_movk_i32 s51, 256'); o(f's_movk_i32 s61, {256 if ND else 0}'); o('s_waitcnt vmcnt(0) lgkmcnt(0)'); o('s_barrier'); o('s_branch K2_ROUND')
    o.label('K2_EPI0')
    o('s_waitcnt lgkmcnt(0)')
    for x in epi_loads(): o(x)
    o.label('K2_EPI')
    cyc(o,12,1); stamp(o,9,'2')
    o('s_nop 9')
    o(f's_mov_b32 s46, {f2u(-LN2)}'); o(f's_mov_b32 s47, {f2u(-LOG2E)}')
    o('s_mov_b32 s48, s46'); o('s_mov_b32 s49, s46')
    for i in range(0,32,2): o(f'v_pk_mul_f32 {r(AGG+i,2)}, {r(AGG+i,2)}, s[48:49]')
    o('s_mov_b32 s48, s47'); o('s_mov_b32 s49, s47')
    for i in range(16): o(f'v_cvt_pk_bf16_f32 v{AGG+i}, v{AGG+2*i}, v{AGG+2*i+1}')
    o('v_cmp_gt_u32 vcc, 25, v35'); o('v_lshlrev_b32 v2, 7, v35'); o('v_lshl_add_u32 v2, v36, 6, v2'); o('v_mov_b32 v3, 0x7ffffff0')
    o('v_cndmask_b32 v2, v3, v2, vcc')
    o('s_waitcnt vmcnt(0)')
    stamp(o,10,'2')
    for mt in range(2):
        for ks in range(8):
            b=XA+4*ks if ks<4 else AGG+4*(ks-4)
            o(mfma(P[mt],WS+8*ks+4*mt,b,'0' if ks==0 else None))
    o('s_nop 11')
    for mt in range(2):
        p=P[mt]
        for i in range(0,16,2): o(f'v_pk_mul_f32 {r(64+i,2)}, {r(p+i,2)}, s[48:49]')
        for i in range(16): o(f'v_exp_f32 v{64+i}, v{64+i}')
        for i in range(0,16,2): o(f'v_pk_add_f32 {r(64+i,2)}, {r(64+i,2)}, 1.0 op_sel_hi:[1,0]')
        for i in range(16): o(f'v_rcp_f32 v{64+i}, v{64+i}')
        for i in range(0,16,2): o(f'v_pk_mul_f32 {r(64+i,2)}, {r(p+i,2)}, {r(64+i,2)}')
        for i in range(8): o(f'v_cvt_pk_bf16_f32 v{80+8*mt+i}, v{64+2*i}, v{65+2*i}')
        for q in range(2): o(f'buffer_store_dwordx4 {r(80+8*mt+4*q,4)}, v2, s[20:23], s14 offen offset:{32*mt+16*q}')
    o('s_waitcnt vmcnt(0)') if STAMP=='2' else None
    stamp(o,11,'2'); stamp_out(o,'2','s3','s12',8)
    o.label('K2_END')
    o('s_endpgm')
    return LDS
```

```python
from common import *

def gen_k1(o):
    SMETA=0; SM2=12800; CNT=25600; STARTS=CNT+2048; RAW=STARTS+2048; LDS=max(RAW+M*32,int(os.environ.get('L1MIN','84000'))); LATE=int(os.environ.get('LATE','2'))
    NI=M//32; KD=(NI+15)//16; REM=NI-16*(KD-1) if KD else 16
    assert KD<=3
    o.label('k1_kernel', kernel=True)
    o('s_cmp_ge_u32 s2, 253'); o('s_cbranch_scc1 K1_PF')
    stamp_init(o,'1'); stamp(o,0,'1')
    o('s_load_dwordx4 s[4:7], s[0:1], 8')
    o('s_load_dwordx2 s[8:9], s[0:1], 24')
    o('s_load_dwordx4 s[12:15], s[0:1], 32')
    o('s_load_dwordx2 s[10:11], s[0:1], 64')
    o('v_lshrrev_b32 v1, 6, v0'); o('v_and_b32 v2, 63, v0')
    o('v_readfirstlane_b32 s3, v1')
    o('s_cmp_ge_u32 s2, 250'); o('s_cbranch_scc1 K1_FRAG')
    o('v_mov_b32 v6, 0'); o('v_lshlrev_b32 v7, 2, v0'); o('v_and_b32 v7, 0x7ff, v7')
    o(f'ds_write_b32 v7, v6 offset:{CNT}')
    o('s_mul_i32 s40, s2, 12800')
    o('s_mul_i32 s41, s2, 102400')
    o('v_lshlrev_b32 v3, 4, v0')
    o(f's_movk_i32 s42, {M//4}'); o('v_cmp_le_u32 s[52:53], s42, v0')
    o('s_movk_i32 s42, 800')
    o('v_cmp_gt_u32 vcc, s42, v0')
    o('v_mov_b32 v5, 0x7ffffff0')
    o('v_mov_b32 v35, 1024')
    o('v_cndmask_b32 v4, v5, v3, vcc')
    o('v_cndmask_b32 v35, v6, v35, s[52:53]')
    o('s_waitcnt lgkmcnt(0)')
    srd(o,24,'s8','s9',E*4)
    o('buffer_load_dwordx4 v[8:11], v4, s[24:27], s40 offen nt')
    srd(o,20,'s6','s7',E*4)
    o('buffer_load_dwordx4 v[12:15], v4, s[20:23], s40 offen nt')
    BL=int(os.environ.get('BL','0'))
    if not BL: o('s_barrier')
    srd(o,16,'s4','s5',E*32)
    o('s_lshl_b32 s43, s3, 10')
    for k in range(KD):
        if k==KD-1 and REM<16:
            o(f's_cmp_ge_u32 s3, {REM}'); o('s_cbranch_scc1 K1_DMADONE')
        o(f's_add_u32 m0, s43, {RAW+k*16384}')
        o(f's_add_u32 s44, s41, {k*16384}')
        o('buffer_load_dwordx4 v3, s[16:19], s44 offen nt lds')
    o.label('K1_DMADONE')
    if BL: o('s_barrier')
    stamp(o,1,'1')
    srd_off(o,28,'s10','s11',WS_E2,E*32); srd_off(o,32,'s10','s11',WS_M2,E*8); srd_off(o,36,'s10','s11',WS_T,250*2048)
    o('s_lshl_b32 s54, s40, 1'); o('s_add_u32 s55, s54, 12800')
    o('s_and_saveexec_b64 s[46:47], vcc')
    o('s_cbranch_execz K1_NOHIST')
    o('s_mov_b32 s45, 83887'); o('s_movk_i32 s48, 200'); o('v_mov_b32 v6, 1')
    o(f's_waitcnt vmcnt({KD})')
    if REM<16:
        o(f's_cmp_lt_u32 s3, {REM}'); o('s_cbranch_scc1 K1_W2'); o(f's_waitcnt vmcnt({KD-1})'); o.label('K1_W2')
    stamp(o,2,'1')
    for i in range(4):
        d=8+i
        o(f'v_mul_u32_u24 v{16+i}, s45, v{d}'); o(f'v_lshrrev_b32 v{16+i}, 24, v{16+i}')
        o(f'v_mul_u32_u24 v{20+i}, s48, v{16+i}'); o(f'v_sub_u32 v{20+i}, v{d}, v{20+i}')
        o(f'v_lshl_add_u32 v{16+i}, v{16+i}, 2, v35')
        o(f'ds_add_rtn_u32 v{28+i}, v{16+i}, v6 offset:{CNT}')
    for i in range(4):
        s_=12+i
        o(f'v_mul_u32_u24 v{24+i}, 41, v{20+i}'); o(f'v_lshrrev_b32 v{24+i}, 10, v{24+i}')
        o(f'v_mul_u32_u24 v{8+i}, 25, v{24+i}'); o(f'v_sub_u32 v{8+i}, v{20+i}, v{8+i}')
        o(f'v_lshlrev_b32 v{8+i}, 19, v{8+i}')
        o(f'v_lshl_or_b32 v{8+i}, v{24+i}, 24, v{8+i}')
        o(f'v_or_b32 v{56+2*i}, v{s_}, v{8+i}')
    o.label('K1_NOHIST')
    o('s_mov_b64 exec, s[46:47]')
    o('v_lshlrev_b32 v32, 5, v2')
    o('s_waitcnt lgkmcnt(0)'); o('s_barrier')
    stamp(o,3,'1')
    o(f'ds_read_b128 v[36:39], v32 offset:{CNT}'); o(f'ds_read_b128 v[40:43], v32 offset:{CNT+16}')
    o(f's_movk_i32 s49, {STARTS}')
    o('v_add_u32 v33, s49, v32')
    o('s_waitcnt lgkmcnt(0)')
    o('v_add3_u32 v53, v36, v37, v38'); o('v_add3_u32 v54, v39, v40, v41'); o('v_add3_u32 v53, v53, v42, v43'); o('v_add_u32 v53, v53, v54')
    o('v_mov_b32 v44, v53')
    wave_scan(o,'v44')
    o('v_sub_u32 v44, v44, v53')
    for i in range(7): o(f'v_add_u32 v{45+i}, v{44+i}, v{36+i}')
    o('ds_write_b128 v33, v[44:47]'); o('ds_write_b128 v33, v[48:51] offset:16')
    def tst():
        o('s_cmp_lg_u32 s3, 15'); o('s_cbranch_scc1 K1_NOT')
        for i in range(8): o(f'v_lshl_or_b32 v{36+i}, v{36+i}, 16, v{44+i}')
        o('s_lshl_b32 s50, s2, 11')
        o(f'buffer_store_dwordx4 v[36:39], v32, s[36:39], s50 offen {STP}'); o(f'buffer_store_dwordx4 v[40:43], v32, s[36:39], s50 offen offset:16 {STP}')
        o.label('K1_NOT')
    if LATE!=2: tst()
    o('s_and_saveexec_b64 s[46:47], vcc')
    o('s_cbranch_execz K1_NOPOS')
    for i in range(4):
        o(f'v_add_u32 v{16+i}, s49, v{16+i}'); o(f'ds_read_b32 v{20+i}, v{16+i}')
    o('v_lshlrev_b32 v34, 7, v0'); o('v_add_u32 v34, s41, v34')
    o('s_waitcnt lgkmcnt(0)')
    for i in range(4):
        o(f'v_add_lshl_u32 v{20+i}, v{20+i}, v{28+i}, 3')
        o(f'v_add_u32 v{57+2*i}, {32*i}, v34')
        o(f'ds_write_b64 v{20+i}, v[{56+2*i}:{57+2*i}]')
    o.label('K1_NOPOS')
    o('s_mov_b64 exec, s[46:47]')
    o('s_waitcnt vmcnt(0) lgkmcnt(0)' if LATE==2 else 's_waitcnt lgkmcnt(0)'); o('s_barrier')
    if LATE==2: tst()
    stamp(o,4,'1')
    o(f'ds_read_b128 v[8:11], v3 offset:{SMETA}'); o(f'ds_read_b128 v[12:15], v3 offset:{SM2}')
    o('v_and_b32 v6, 0x3fe, v0'); o('v_lshlrev_b32 v6, 2, v6')
    o('v_and_b32 v7, 1, v0'); o('v_lshlrev_b32 v7, 4, v7'); o(f's_sub_u32 s45, {RAW}, s41'); o('v_add_u32 v7, s45, v7')
    for k in range(KD): o(f'ds_read_b32 v{16+k}, v6 offset:{4+k*4096}')
    o(f's_waitcnt lgkmcnt({KD})')
    def mst():
        o(f'buffer_store_dwordx4 v[8:11], v4, s[32:35], s54 offen {STP}')
        o(f'buffer_store_dwordx4 v[12:15], v4, s[32:35], s55 offen {STP}')
    if LATE!=1: mst()
    if LATE==2: o('s_waitcnt lgkmcnt(0)')
    elif KD:
        o(f's_waitcnt vmcnt(0) lgkmcnt(0)'); o('s_barrier')
    stamp(o,5,'1')
    for k in range(KD):
        o(f'v_add_u32 v{16+k}, v{16+k}, v7')
        o(f'ds_read_b128 v[{24+4*k}:{27+4*k}], v{16+k}')
    if LATE==1: mst()
    for k in range(KD):
        if k==KD-1 and REM<16:
            o(f's_cmp_ge_u32 s3, {REM}'); o('s_cbranch_scc1 K1_FIN')
        o(f's_add_u32 s44, s41, {k*16384}')
        o(f's_waitcnt lgkmcnt({KD-1-k})')
        o(f'buffer_store_dwordx4 v[{24+4*k}:{27+4*k}], v3, s[28:31], s44 offen {STP}')
    o.label('K1_FIN')
    stamp(o,6,'1')
    o('s_waitcnt vmcnt(0)') if STAMP=='1' else None
    stamp(o,7,'1'); stamp_out(o,'1','s2','s3',16)
    o('s_endpgm')
    o.label('K1_FRAG')
    o('s_sub_u32 s16, s2, 250'); o('s_lshl_b32 s16, s16, 4'); o('s_add_u32 s16, s16, s3')
    o('s_cmp_ge_u32 s16, 36'); o('s_cbranch_scc1 K1_END')
    o('s_waitcnt lgkmcnt(0)')
    srd_off(o,28,'s10','s11',WS_WF,36*1024)
    o('v_and_b32 v3, 31, v2'); o('v_lshrrev_b32 v4, 5, v2')
    o('s_and_b32 s17, s16, 1')
    o('s_lshr_b32 s18, s16, 1')
    o(f's_mov_b32 s19, {f2u(-LOG2E)}')
    o('s_movk_i32 s20, 1024'); o('s_movk_i32 s21, 512')
    o('s_cmp_ge_u32 s16, 20'); o('s_cbranch_scc1 K1_FU')
    srd(o,24,'s12','s13',144*128)
    o('s_lshl_b32 s22, s18, 4')
    o('s_cmp_ge_u32 s18, 4'); o('s_cselect_b32 s22, 128, s22')
    o('s_sub_u32 s23, s18, 6'); o('s_lshl_b32 s23, s23, 4'); o('s_add_u32 s23, s23, 64')
    o('s_cmp_ge_u32 s18, 6'); o('s_cselect_b32 s22, s23, s22'); o('s_cselect_b32 s19, 1.0, s19')
    o('s_lshl_b32 s23, s17, 5'); o('v_add_u32 v5, s23, v3')
    o('s_branch K1_FGO')
    o.label('K1_FU')
    srd(o,24,'s14','s15',128*128)
    o('s_mov_b32 s19, 1.0')
    o('s_sub_u32 s22, s18, 10')
    o('s_cmp_ge_u32 s22, 4'); o('s_cselect_b32 s20, 512, s20'); o('s_cselect_b32 s21, 1024, s21')
    o('s_lshl_b32 s22, s22, 4')
    o('v_bfe_u32 v5, v3, 2, 1'); o('v_lshlrev_b32 v5, 5, v5')
    o('v_lshrrev_b32 v6, 3, v3'); o('v_lshl_add_u32 v5, v6, 2, v5')
    o('v_and_b32 v6, 3, v3'); o('v_add_u32 v5, v5, v6')
    o('s_lshl_b32 s23, s17, 4'); o('v_add_u32 v5, s23, v5')
    o.label('K1_FGO')
    o('s_lshl_b32 s22, s22, 7')
    o('v_lshlrev_b32 v5, 1, v5'); o('v_mul_u32_u24 v6, s20, v4'); o('v_add3_u32 v5, v5, v6, s22')
    o('v_add_u32 v6, s21, v5')
    for j in range(8): o(f'buffer_load_ushort v{8+j}, v{5 if j<4 else 6}, s[24:27], 0 offen offset:{(j&3)*128}')
    o('s_waitcnt vmcnt(0)')
    for j in range(8):
        o(f'v_lshlrev_b32 v{8+j}, 16, v{8+j}'); o(f'v_mul_f32 v{8+j}, s19, v{8+j}')
    for j in range(4): o(f'v_cvt_pk_bf16_f32 v{16+j}, v{8+2*j}, v{9+2*j}')
    o('s_cmp_lg_u32 s18, 5'); o('s_cbranch_scc1 K1_FST')
    for j in range(4):
        o(f'v_lshlrev_b32 v20, 16, v{16+j}'); o(f'v_and_b32 v21, 0xffff0000, v{16+j}')
        o(f'v_sub_f32 v20, v{8+2*j}, v20'); o(f'v_sub_f32 v21, v{9+2*j}, v21')
        o(f'v_cvt_pk_bf16_f32 v{16+j}, v20, v21')
    o.label('K1_FST')
    o('v_lshlrev_b32 v7, 4, v2'); o('s_lshl_b32 s16, s16, 10')
    o('buffer_store_dwordx4 v[16:19], v7, s[28:31], s16 offen')
    o('s_endpgm')
    o.label('K1_PF')
    if XP:
        o('s_sub_u32 s4, s2, 256'); o('s_cmp_ge_u32 s4, 256'); o('s_cbranch_scc1 K1_END')
        o('s_load_dwordx2 s[6:7], s[0:1], 0'); o('s_lshr_b32 s4, s4, 3'); o(f's_mul_i32 s4, s4, {XP*16384}'); o('v_lshlrev_b32 v3, 4, v0')
        o('s_waitcnt lgkmcnt(0)'); srd(o,8,'s6','s7',N*128)
        for k in range(XP): o(f'buffer_load_dwordx4 v[4:7], v3, s[8:11], s4 offen'); o('s_add_u32 s4, s4, 16384')
    o.label('K1_END')
    o('s_endpgm')
    return LDS
```

```python
from common import *
CNT=0; TOT=64; LUT1=128; SRC=2240; DL=10432; EL=14528; XS=30912; EB=XS+65536
PD=int(os.environ.get('PD','5')); CAPS=int(os.environ.get('CAPS','1280')); PS=(CAPS+511)//512; ND=CAPS//256; NP=PD+PS
WU=EB+CAPS*32; LDS=WU+16384; assert LDS<=163840
XG=72
WS,WE,Q,AGG,P=128,160,176,192,(224,240)
XA=96; EBUF=(112,64); OHA=116; OHT=56; TMP=40
cXg=(2,3,4,13); cXr=(5,6,7,8); pSRC=9; pEL=10; pDL=11; pD4=12; cL2=14; cL1=15
vBase,vCnt,vG0=16,17,18
vD4=19; vEL=20; vDL=21; vS=22; aT=24; aX=28; aE=(68,69); aL=70; cH=71
vDMA=(124,125,126,127,32,33,34,39)
uid=[0]
def r(a,n): return f'v[{a}:{a+n-1}]'
def mfma(d,a,b,c=None): return f'v_mfma_f32_32x32x16_bf16 {r(d,16)}, {r(a,4)}, {r(b,4)}, {r(d,16) if c is None else c}'

WELO=int(os.environ.get('WELO','0')); ELP=os.environ.get('ELP',''); BAL=int(os.environ.get('BAL','1'))
NX=int(os.environ.get('NX','4')); PRIO=int(os.environ.get('PRIO','30')); PRIOA=int(os.environ.get('PRIOA','0'))
EDP=os.environ.get('EDP','nt')
DROP=os.environ.get('DROP','').split(',')
def pre_x(nt): return [mfma(P[nt],XA+4*s,WS+8*s+4*nt,'0' if s==0 else None) for s in range(4)]
def pre_r(nt,b):
    d=P[nt]; l=[mfma(d,OHA+4*s,Q+8*s+4*nt) for s in range(2)]+[mfma(d,EBUF[b],WE+4*nt)]
    if WELO: l.append(mfma(d,EBUF[b],WE+8+4*nt))
    return l
def aggm(nt): return [mfma(AGG+16*nt,P[nt]+4*s,OHT+4*s) for s in range(2)]
def xaddr(): return [f'v_mad_u32_u16 v{aX+j}, v{vS+j//2}, s60, v{cXg[j]} op_sel:[{j%2},0,0,0]' for j in range(4)]
def xdma(b): return [f's_add_u32 m0, s44, {32768*b}','s_nop 0']+[f'buffer_load_dwordx4 v{aX+j}, s[24:27], 0 offen offset:{1024*j} lds' for j in range(4)]
def xreads(b): return [f'ds_read_b128 {r(XA+4*s,4)}, v{cXr[s]} offset:{32768*b}' for s in range(4)]
def sread(off,v=None): return f'ds_read_b64 {r(v or vS,2)}, v{pSRC} offset:{SRC+64*off}'
def elread(off,v=None): return f'ds_read_b32 v{v or vEL}, v{pEL} offset:{EL+128*off}'
EM=int(os.environ.get('EM','0')); XPOS=[int(x) for x in os.environ.get('XPOS','44,62,82,100').split(',')]
def eaddr(b): return [f'v_add_u32 v{aE[b]}, v{vEL}, v{cH}']+([f'v_cmp_gt_i32 s[{64+2*b}:{65+2*b}], 0, v{vEL}'] if ND else [])
def eload(b):
    ld=f'buffer_load_dwordx4 {r(EBUF[b],4)}, v{aE[b]}, s[36:39], 0 offen {EDP}'
    if not (ND and EM): return [ld]
    uid[0]+=1; L=f'K2_EL{uid[0]}'
    return [f's_not_b64 exec, s[{64+2*b}:{65+2*b}]',f's_cbranch_execz {L}',ld,L+':','s_mov_b64 exec, -1']
def efix(b):
    if not ND: return []
    return [f'v_xor_b32 v{aL}, 0x80000000, v{aE[b]}', f's_mov_b64 exec, s[{64+2*b}:{65+2*b}]', f'ds_read_b128 {r(EBUF[b],4)}, v{aL}', 's_mov_b64 exec, -1']
def oaddr(): return [f'v_add_u32 v{vDL}, v{vDL}, v{cL2}']
def oreads(): return [f'ds_read2_b64 {r(OHA+4*s,4)}, v{vDL} offset0:{132*s} offset1:{132*s+66}' for s in range(2)]
def taddr(): return [f'v_add_u32_sdwa v{aT+q}, v{vD4}, v{cL1} dst_sel:DWORD dst_unused:UNUSED_PAD src0_sel:BYTE_{q} src1_sel:DWORD' for q in range(4)]
def treads(): return [f'ds_read_b64_tr_b16 {r(OHT+2*q,2)}, v{aT+q}' for q in range(4)]
def dma(k,v): return [f's_add_u32 m0, s57, {8192*k}', 's_nop 0', f'buffer_load_dwordx4 v{v}, s[28:31], 0 offen {ELP} lds']
def silu(p):
    l=[f'v_exp_f32 v{TMP+i}, v{p+i}' for i in range(16)]
    l+=[f'v_pk_add_f32 {r(TMP+i,2)}, {r(TMP+i,2)}, 1.0 op_sel_hi:[1,0]' for i in range(0,16,2)]
    l+=[f'v_rcp_f32 v{TMP+i}, v{TMP+i}' for i in range(16)]
    l+=[f'v_pk_mul_f32 {r(TMP+i,2)}, {r(p+i,2)}, {r(TMP+i,2)}' for i in range(0,16,2)]
    l+=[f'v_cvt_pk_bf16_f32 v{p+i}, v{TMP+2*i}, v{TMP+2*i+1}' for i in range(8)]
    return l
def weave(o0,main,side):
    def o(x):
        if x.endswith(':'): o0.label(x[:-1]); return
        for d in DROP:
            if d and x.startswith(d.replace(';',',')): return
        o0(x)
    for i in range(len(main)+1):
        for x in side.get(i,[]): o(x)
        if i<len(main): o(main[i])
class Side(dict):
    def add(s,p,x): s.setdefault(p,[]).extend(x if isinstance(x,list) else [x])
def phaseA(o,u,vm,dmas,first=False,ramp=False):
    S=Side(); nb=1-u
    S.add(0,[f'ds_read_b32 v{vD4}, v{pD4} offset:{DL+32*u}', sread(u+2 if ramp else u+3), elread(u+2), f'ds_read_u8 v{vDL}, v{pDL} offset:{DL+32*(u+1)}'])
    if PRIO: S.add(PRIOA,'s_setprio 1')
    if not first: S.add(1,aggm(1)[1])
    for p,x in zip((4,7,10,13),pre_x(1)): S.add(p,x)
    S.add(14,['s_waitcnt lgkmcnt(0)']+taddr())
    S.add(16,f's_waitcnt vmcnt({vm})')
    for i,x in enumerate(xreads(nb)+treads()): S.add(16+i,x)
    for p,x in zip((24,27,30,33),pre_r(1,u)): S.add(p,x)
    S.add(35,eaddr(u)+oaddr()+xaddr())
    S.add(36,eload(u))
    S.add(37,['s_waitcnt lgkmcnt(0)']+oreads())
    for i,(k,v) in enumerate(dmas): S.add(38+i,dma(k,v))
    x=xdma(u if ramp else nb); S.add(42,x[0])
    if ramp: S.add(48,sread(u+3))
    for i in range(4):
        p=43+i if ramp else XPOS[i]
        if p<56: S.add(p,x[2+i])
    S.add(54,aggm(0)[0])
    weave(o,silu(P[0]),S)
def phaseB(o,u,vm,inc,barchk,last=None,ramp=False):
    S=Side(); nb=1-u
    S.add(2,aggm(0)[1])
    if False:
        uid[0]+=1; L=f'K2_NB{uid[0]}'
        S.add(3,['s_sub_u32 s56, s56, 1','s_cmp_lg_u32 s56, 0',f's_cbranch_scc1 {L}','s_waitcnt vmcnt(9)','s_barrier',L+':'])
    if last is None:
        S.add(14,efix(nb))
        for i in range(4):
            if XPOS[i]>=56 and not ramp: S.add(XPOS[i]-56,xdma(nb)[2+i])
        S.add(27,'s_waitcnt lgkmcnt(0)')
        for p,x in zip((5,8,11,24,27,30,33,36),pre_x(0)+pre_r(0,nb)): S.add(p,x)
        if inc: S.add(13,[f'v_add_u32 v{pSRC}, 128, v{pSRC}',f'v_add_u32 v{pEL}, 256, v{pEL}',f'v_add_u32 v{pDL}, 64, v{pDL}',f'v_add_u32 v{pD4}, 64, v{pD4}'])
        if ramp: S.add(38,xaddr()); S.add(44,xdma(nb))
    else:
        S.add(4,last)
    if PRIO: S.add(PRIO,'s_setprio 0')
    S.add(54,aggm(1)[0])
    weave(o,silu(P[1]),S)

def gen_k2(o):
    def qblock():
        for nt in range(2):
            for s in range(4): o(mfma(P[nt],XG+4*s,AGG+8*s+4*nt,'0' if s==0 else None))
        o(f's_mov_b32 s46, {f2u(-LOG2E)}')
        o('s_nop 11')
        for nt in range(2):
            for i in range(16): o(f'v_mul_f32 v{P[nt]+i}, s46, v{P[nt]+i}')
            for s in range(2):
                for i in range(4): o(f'v_cvt_pk_bf16_f32 v{Q+8*s+4*nt+i}, v{P[nt]+8*s+2*i}, v{P[nt]+8*s+2*i+1}')
        for i in range(32): o(f'v_mov_b32 v{AGG+i}, 0')
    def xgload():
        o('s_mul_i32 s14, s3, 200'); o('s_mul_i32 s15, s58, 25'); o('s_add_u32 s14, s14, s15'); o('s_lshl_b32 s14, s14, 7')
        for s in range(4): o(f'buffer_load_dwordx4 {r(XA+4*s,4)}, v37, s[16:19], s14 offen offset:{32*s}')
    o.label('k2_kernel', kernel=True)
    o('s_and_b32 s3, s2, 7'); o('s_lshl_b32 s3, s3, 5'); o('s_lshr_b32 s4, s2, 3'); o('s_add_u32 s3, s3, s4')
    o('s_cmp_ge_u32 s2, 256'); o('s_cbranch_scc1 K2_END')
    o('s_cmp_ge_u32 s3, 250'); o('s_cbranch_scc1 K2_END')
    stamp_init(o,'2'); stamp(o,0,'2')
    o('s_load_dwordx2 s[4:5], s[0:1], 0'); o('s_load_dwordx2 s[8:9], s[0:1], 8'); o('s_load_dwordx2 s[6:7], s[0:1], 48'); o('s_load_dwordx2 s[10:11], s[0:1], 64')
    o('v_lshrrev_b32 v32, 6, v0'); o('v_and_b32 v1, 63, v0'); o('v_readfirstlane_b32 s12, v32')
    o('v_and_b32 v33, 255, v0' if ND else 'v_lshrrev_b32 v33, 1, v0'); o('v_lshlrev_b32 v34, 11, v33')
    o('s_lshl_b32 s13, s3, 2'); o(f's_cmp_lt_u32 s12, {4 if ND else 8}'); o('s_cselect_b32 s15, 1024, 0'); o('s_add_u32 s13, s13, s15')
    o('v_and_b32 v35, 31, v1'); o('v_lshrrev_b32 v36, 5, v1')
    o('v_lshlrev_b32 v37, 7, v35'); o('v_lshl_add_u32 v37, v36, 4, v37')
    o('v_cmp_gt_u32 vcc, 25, v35'); o('v_mov_b32 v38, 0x7ffffff0'); o('s_nop 0'); o('v_cndmask_b32 v37, v38, v37, vcc')
    o('v_lshlrev_b32 v38, 4, v1')
    o('s_waitcnt lgkmcnt(0)')
    srd_off(o,64,'s10','s11',WS_T,250*2048)
    o('buffer_load_dword v39, v34, s[64:67], s13 offen')
    srd(o,16,'s4','s5',N*128); srd(o,20,'s6','s7',N*128)
    srd_off(o,28,'s10','s11',WS_E2,E*32); srd_off(o,32,'s10','s11',WS_M2,E*8); srd_off(o,40,'s10','s11',WS_WF,36*1024)
    o('s_lshl_b32 s46, s12, 10'); o(f's_add_u32 s57, s46, {EB}')
    for k in range(3):
        if k==2: o('s_cmp_ge_u32 s12, 4'); o('s_cbranch_scc1 K2_WD')
        o(f's_add_u32 m0, s46, {XS+16384+8192*k}'); o(f's_add_u32 s45, s46, {8192*k}')
        o('buffer_load_dwordx4 v38, s[40:43], s45 offen lds')
    o.label('K2_WD')
    srd(o,36,'s8','s9',E*32)
    o('s_sub_u32 s24, s4, 4096'); o('s_subb_u32 s25, s5, 0'); o(f's_mov_b32 s26, {N*128+4096}'); o('s_mov_b32 s27, 0x00020000')
    o('s_movk_i32 s60, 128')
    o('v_and_b32 v40, 7, v1'); o('v_lshrrev_b32 v41, 4, v1'); o('v_xor_b32 v40, v40, v41'); o('v_lshlrev_b32 v40, 4, v40'); o('v_xor_b32 v41, 64, v40')
    for j in range(4): o(f'v_add_u32 v{cXg[j]}, {4096-1024*j}, v{40+j%2}')
    o('s_lshl_b32 s44, s12, 12'); o(f's_add_u32 s44, s44, {XS}')
    o('v_bfe_u32 v41, v1, 1, 3'); o('v_xor_b32 v41, v41, v36'); o('v_lshlrev_b32 v41, 4, v41')
    o('v_lshlrev_b32 v40, 7, v35'); o('v_add_u32 v40, s44, v40')
    for s in range(4):
        o(f'v_xor_b32 v42, {32*s}, v41'); o(f'v_add_u32 v{cXr[s]}, v40, v42')
    o(f'v_lshlrev_b32 v{cH}, 4, v36')
    o(f'v_mul_u32_u24 v{cL2}, 264, v36'); o(f'v_add_u32 v{cL2}, {LUT1}, v{cL2}')
    o('v_bfe_u32 v40, v1, 4, 1'); o('v_and_b32 v41, 3, v1'); o('v_lshl_add_u32 v40, v40, 2, v41')
    o(f'v_mul_u32_u24 v{cL1}, 264, v40'); o(f'v_add_u32 v{cL1}, {LUT1}, v{cL1}')
    o('v_bfe_u32 v40, v0, 5, 3')
    o('v_lshlrev_b32 v41, 2, v40'); o('v_sub_u32 v41, v35, v41')
    o('v_cmp_gt_u32 vcc, 4, v41')
    o('v_mov_b32 v42, 0x3f80'); o('v_mov_b32 v43, 0'); o('v_cndmask_b32 v42, v43, v42, vcc')
    o('v_lshlrev_b32 v41, 4, v41'); o('v_lshlrev_b64 v[42:43], v41, v[42:43]')
    o('v_mul_u32_u24 v44, 264, v40'); o('v_lshl_add_u32 v44, v35, 3, v44')
    o(f'ds_write_b64 v44, v[42:43] offset:{LUT1}')
    o('v_mov_b32 v44, 0'); o('v_mov_b32 v45, 0'); o(f'ds_write_b64 v44, v[44:45] offset:{TOT}')
    o('s_mov_b32 s50, 0'); o('s_mov_b32 s59, 0'); o(f's_movk_i32 s51, {PD*512}'); o(f's_movk_i32 s61, {CAPS}'); o('s_mov_b32 s52, 1')
    o.label('K2_ROUND')
    o('v_lshlrev_b32 v40, 4, v0'); o('v_lshlrev_b32 v41, 3, v0')
    for i in range(4): o(f'v_mov_b32 v{44+i}, -1'); o(f'v_mov_b32 v{48+i}, 0'); o(f'v_mov_b32 v{52+i}, 0x03ffffff')
    o('v_mov_b32 v42, 0xf8f8f8f8'); o('v_mov_b32 v43, 0xf8f8f8f8')
    o(f'ds_write_b128 v40, v[44:47] offset:{SRC}'); o(f'ds_write_b64 v41, v[42:43] offset:{DL}')
    for a in (EL,EL+8192,XS,XS+8192): o(f'ds_write_b128 v40, v[52:55] offset:{a}')
    for i in range(4): o(f'ds_write_b128 v48, v[48:51] offset:{CNT+16*i}')
    o(f's_waitcnt vmcnt(0) lgkmcnt(0)'); o('s_barrier')
    o('s_cmp_eq_u32 s52, 0'); o('s_cbranch_scc1 K2_NOSCAN')
    stamp(o,1,'2')
    XR=XS+36864
    o('s_lshl_b32 s46, s12, 10'); o('s_mul_i32 s15, s3, 25600'); o('s_add_u32 s15, s15, s46'); o('v_add_u32 v40, s15, v38')
    for k in (3,0,1,2):
        if k==3: o('s_cmp_ge_u32 s12, 2'); o('s_cbranch_scc1 K2_XD')
        o(f's_add_u32 m0, s46, {XR+8192*k}'); o(f'v_add_u32 v41, {8192*k}, v40')
        o('buffer_load_dwordx4 v41, s[16:19], 0 offen lds')
        if k==3: o.label('K2_XD')
    for k in range(2):
        o(f's_add_u32 m0, s46, {WU+8192*k}'); o(f's_add_u32 s45, s46, {20480+8192*k}')
        o('buffer_load_dwordx4 v38, s[40:43], s45 offen lds')
    o(f'v_lshrrev_b32 v{vCnt}, 16, v39'); o('v_and_b32 v39, 0xffff, v39')
    o('s_movk_i32 s46, 3200'); o(f'v_mad_u32_u24 v{vG0}, v33, s46, v39')
    if ND: o(f'v_mov_b32 v41, v{vCnt}')
    else: o('v_and_b32 v40, 1, v0'); o('v_sub_u32 v40, 1, v40'); o(f'v_mul_u32_u24 v41, v40, v{vCnt}')
    wave_scan(o,'v41')
    o(f's_and_b32 s47, s12, {4 if ND else 0}'); o('v_readlane_b32 s46, v41, 63')
    o('s_mov_b64 exec, 1'); o('v_mov_b32 v43, s47'); o('v_mov_b32 v42, s46')
    o(f'ds_add_rtn_u32 v42, v43, v42 offset:{TOT}')
    o('s_waitcnt lgkmcnt(0)'); o('v_readfirstlane_b32 s46, v42'); o('s_mov_b64 exec, -1')
    o(f'v_sub_u32 v{vBase}, v41, v{vCnt}'); o(f'v_add_u32 v{vBase}, s46, v{vBase}')
    o.label('K2_NOSCAN')
    o(f's_cmp_lt_u32 s12, {4 if ND else 8}'); o('s_cselect_b32 s46, s50, s59'); o('s_cselect_b32 s47, s51, s61'); o(f's_cselect_b32 s48, 0, {PD*2048}')
    o(f'v_sub_u32 v40, s46, v{vBase}')
    o('v_add_u32 v41, s47, v40'); o(f'v_min_i32 v41, v41, v{vCnt}')
    o('v_max_i32 v42, 0, v40')
    if not ND: o('v_and_b32 v43, 1, v0'); o('v_add_u32 v42, v42, v43')
    o('v_sub_u32 v43, v42, v40'); o('v_lshl_add_u32 v43, v43, 2, s48')
    o(f'v_add_u32 v42, v42, v{vG0}'); o(f'v_add_u32 v41, v41, v{vG0}')
    o.label('K2_GL')
    st=1 if ND else 2
    for i in range(8):
        o('v_cmpx_lt_i32 vcc, v42, v41'); o(f'ds_write_b32 v43, v42 offset:{XS+4*st*i}'); o(f'v_add_u32 v42, {st}, v42')
    o(f'v_add_u32 v43, {32*st}, v43'); o('s_cbranch_execnz K2_GL')
    o.label('K2_GD')
    o('s_mov_b64 exec, -1')
    o('s_waitcnt lgkmcnt(0)'); o('s_barrier')
    stamp(o,2,'2')
    G,MT,GR,RK,CA=44,72,88,224,232
    o('v_lshlrev_b32 v40, 2, v0'); o('v_mov_b32 v41, 0')
    for k in range(NP): o(f'ds_read_b32 v{G+k}, v40 offset:{XS+2048*k}')
    o(f'ds_read_b64 v[54:55], v41 offset:{TOT}')
    o('v_and_b32 v42, 0x1fe, v0'); o('v_lshlrev_b32 v42, 1, v42')
    o('v_and_b32 v43, 1, v0'); o('v_lshlrev_b32 v43, 4, v43')
    o('s_waitcnt lgkmcnt(0)')
    dv=list(vDMA)
    for k in range(ND): o(f'ds_read_b32 v{dv[k]}, v42 offset:{XS+PD*2048+1024*k}')
    order=sorted(range(NP),key=lambda k:((k+0.5)*512/max(1,3200-M) if k<PD else (k-PD+0.5)*512/max(1,M)))
    if os.environ.get('ORD','S')=='S': order=list(range(PD,NP))+list(range(PD))
    if os.environ.get('ORD','S')[0].isdigit(): order=[int(c) for c in os.environ['ORD']]
    for k in order:
        o(f'v_lshlrev_b32 v{G+k}, 3, v{G+k}')
        o(f'buffer_load_dwordx2 {r(MT+2*k,2)}, v{G+k}, s[32:35], 0 offen' if k<PD else f'buffer_load_dword v{MT+2*k}, v{G+k}, s[32:35], 0 offen')
    o('v_readfirstlane_b32 s53, v54'); o('v_readfirstlane_b32 s62, v55')
    o('s_waitcnt lgkmcnt(0)')
    for k in range(ND): o(f'v_lshl_add_u32 v{dv[k]}, v{dv[k]}, 5, v43')
    D1=min(ND,int(os.environ.get('D1','0')))
    for k in range(D1):
        for x in dma(k,dv[k]): o(x)
    o('s_sub_i32 s54, s53, s50'); o('s_min_i32 s54, s54, s51'); o('s_sub_i32 s63, s62, s59'); o('s_min_i32 s63, s63, s61')
    stamp(o,3,'2')
    o('s_cmp_eq_u32 s52, 0'); o('s_cbranch_scc1 K2_NOW')
    o(f'v_add_u32 v44, {XS+16384}, v38')
    for i in range(20): o(f'ds_read_b128 {r(WS+4*i if i<12 else AGG+4*(i-12),4)}, v44 offset:{1024*i}')
    o.label('K2_NOW')
    o('v_mov_b32 v41, 1')
    for k in range(NP):
        kk=k if k<PD else k-PD
        o(f'v_add_u32 v40, {512*kk}, v0')
        o(f'v_cmp_gt_i32 s[{64+2*k}:{65+2*k}], {"s54" if k<PD else "s63"}, v40')
        if k>=PD: o('v_lshlrev_b32 v40, 5, v40'); o(f'v_add_u32 v{MT+2*k+1}, {hex(0x80000000+EB)}, v40')
    for i,k in enumerate(order):
        o(f's_waitcnt vmcnt({NP+D1-1-i})')
        o(f'v_lshrrev_b32 v{GR+k}, 24, v{MT+2*k}'); o(f'v_lshlrev_b32 v{CA+k}, 2, v{GR+k}')
        o(f's_mov_b64 exec, s[{64+2*k}:{65+2*k}]')
        o(f'ds_add_rtn_u32 v{RK+k}, v{CA+k}, v41 offset:{CNT}')
        o('s_mov_b64 exec, -1')
    o('s_movk_i32 s46, 512')
    stamp(o,4,'2')
    def lw(k):
        o(f'v_cmp_gt_u32 vcc, s46, v{RK+k}')
        o(f'v_lshl_add_u32 v{RK+k}, v{GR+k}, 9, v{RK+k}'); o(f'v_lshlrev_b32 v{GR+k}, 1, v{RK+k}'); o(f'v_lshlrev_b32 v{CA+k}, 2, v{RK+k}')
        o(f's_and_b64 exec, vcc, s[{64+2*k}:{65+2*k}]')
        o(f'ds_write_b16 v{GR+k}, v{MT+2*k} offset:{SRC}')
        o(f'ds_write_b32 v{CA+k}, v{MT+2*k+1} offset:{EL}')
        o(f'ds_write_b8_d16_hi v{RK+k}, v{MT+2*k} offset:{DL}')
        o('s_mov_b64 exec, -1')
    for i,k in enumerate(order):
        o(f's_waitcnt lgkmcnt({min(15,NP-1-i+3*i)})'); lw(k)
    for k in range(D1,ND):
        for x in dma(k,dv[k]): o(x)
    o('v_and_b32 v40, 7, v1'); o('v_lshlrev_b32 v40, 2, v40')
    o('v_lshrrev_b32 v52, 3, v1'); o('v_lshlrev_b32 v52, 2, v52')
    o('s_waitcnt lgkmcnt(0)'); o('s_barrier')
    stamp(o,5,'2')
    o(f'ds_read_b32 v41, v40 offset:{CNT}'); o(f'ds_read_b32 v53, v52 offset:{CNT}')
    o('s_waitcnt lgkmcnt(0)')
    o('s_cmp_eq_u32 s52, 0'); o('s_cbranch_scc1 K2_NOSEL')
    if BAL:
        o('v_lshl_add_u32 v53, v53, 5, v52'); o('v_lshl_add_u32 v54, v41, 5, v40')
        o('v_cmp_gt_u32 vcc, v54, v53')
        o('s_sub_u32 s47, 11, s12'); o('s_cmp_lt_u32 s12, 4'); o('s_cselect_b32 s47, s12, s47')
        o('s_mov_b32 s58, 0')
        for gi in range(1,8):
            o(f's_bfe_u32 s48, {"vcc_lo" if gi<4 else "vcc_hi"}, {hex((8<<16)|(8*(gi%4)))}'); o('s_bcnt1_i32_b32 s48, s48')
            o('s_cmp_eq_u32 s48, s47'); o(f's_cselect_b32 s58, {gi}, s58')
    o('s_mul_i32 s14, s3, 200'); o('s_mul_i32 s15, s58, 25'); o('s_add_u32 s14, s14, s15'); o('s_lshl_b32 s14, s14, 7')
    o('s_lshl_b32 s15, s15, 7'); o(f's_add_u32 s15, s15, {XR}')
    o(f'v_lshl_add_u32 v53, v35, 7, v{cH}'); o('v_add_u32 v53, s15, v53')
    for s in range(4): o(f'ds_read_b128 {r(XG+4*s,4)}, v53 offset:{32*s}')
    o('s_mov_b32 s56, 1')
    o.label('K2_NOSEL')
    o('s_lshl_b32 s47, s58, 9')
    o('v_add_u32 v40, s47, v52'); o(f'v_lshlrev_b32 v{pSRC}, 1, v40')
    o('v_and_b32 v40, 7, v1'); o('v_bfe_u32 v53, v1, 3, 2'); o('v_lshl_add_u32 v40, v40, 2, v53')
    o(f'v_add_u32 v{pDL}, s47, v40'); o(f'v_lshlrev_b32 v{pEL}, 2, v{pDL}')
    o('v_bfe_u32 v53, v1, 2, 2'); o('v_lshl_add_u32 v40, v36, 2, v53')
    o('v_lshlrev_b32 v40, 2, v40'); o(f'v_add_u32 v{pD4}, s47, v40')
    o('v_cmp_lt_u32 vcc, s46, v41'); o('v_readlane_b32 s55, v41, s58')
    stamp(o,6,'2')
    o(sread(0)); o(elread(0)); o(sread(1,42)); o(elread(1,44)); o(f'ds_read_u8 v{vDL}, v{pDL} offset:{DL}')
    o('s_add_u32 s55, s55, 31'); o('s_lshr_b32 s55, s55, 5')
    o('s_mov_b64 s[48:49], vcc')
    o('s_waitcnt lgkmcnt(0)')
    for x in xaddr()+xdma(0): o(x)
    for x in eaddr(0)+[x for x in eload(0) if x.startswith('buffer')]: o(x)
    o(f'v_mov_b32 v{vS}, v42'); o(f'v_mov_b32 v{vS+1}, v43'); o(f'v_mov_b32 v{vEL}, v44')
    for x in xaddr()+eaddr(1)+oaddr()+oreads()+[sread(2)]: o(x)
    o('s_cmp_eq_u32 s52, 0'); o('s_cbranch_scc1 K2_NOQ')
    o('s_mov_b32 s52, 0')
    qblock()
    o.label('K2_NOQ')
    o('s_waitcnt vmcnt(4)'); o('s_barrier')
    o('s_cmp_lg_u64 s[48:49], 0'); o('s_cbranch_scc1 K2_OVF')
    stamp(o,7,'2')
    o('s_add_u32 s50, s50, s51'); o('s_add_u32 s59, s59, s61')
    o('s_cmp_lt_u32 s50, s53'); o('s_cselect_b32 s45, 1, 0'); o('s_cmp_lt_u32 s59, s62'); o('s_cselect_b32 s45, 1, s45')
    o('s_cmp_eq_u32 s55, 0'); o('s_cbranch_scc1 K2_LOOPEND')
    RAMP=int(os.environ.get('RAMP','1'))
    if RAMP==0:
        for x in xdma(1)+eload(1): o(x)
    o(f's_waitcnt vmcnt({0 if RAMP else 5})')
    for x in xreads(0)+efix(0): o(x)
    if RAMP: weave(o,xdma(1)+eload(1),{})
    for i in range(4): o(f'v_mov_b32 v{OHT+4+i}, 0'); o(f'v_mov_b32 v{P[1]+4+i}, 0')
    o('s_waitcnt lgkmcnt(0)')
    for x in pre_x(0)+pre_r(0,0): o(x)
    if RAMP<2:
        for x in xaddr()+xdma(0): o(x)
    o('s_nop 7')
    stamp(o,8,'2'); cyc(o,12,0)
    if RAMP==2:
        phaseA(o,0,0,[],first=True,ramp=True)
        o('s_sub_u32 s55, s55, 1'); o('s_cmp_eq_u32 s55, 0'); o('s_cbranch_scc1 K2_LAST')
        phaseB(o,0,5,0,True,ramp=True)
        o('s_waitcnt vmcnt(4)'); o('s_branch K2_LOOP1')
    AL=int(os.environ.get('AL','0'))
    if AL: o('.p2align 6, , 63')
    if AL==2: o('s_nop 0')
    o.label('K2_LOOP')
    for u in range(2):
        if u: o.label('K2_LOOP1')
        phaseA(o,u,4,[])
        o('s_sub_u32 s55, s55, 1'); o('s_cmp_eq_u32 s55, 0'); o('s_cbranch_scc1 K2_LAST')
        phaseB(o,u,9,u,True)
    o('s_branch K2_LOOP')
    def epi_loads():
        uid[0]+=1; L=f'K2_XV{uid[0]}'
        l=[f'v_add_u32 v{aL}, {WU}, v38']+[f'ds_read_b128 {r(WS+4*i,4)}, v{aL} offset:{1024*i}' for i in range(16)]
        l+=['s_cmp_eq_u32 s56, 1',f's_cbranch_scc1 {L}']+[f'buffer_load_dwordx4 {r(XG+4*s,4)}, v37, s[16:19], s14 offen offset:{32*s}' for s in range(4)]+[L+':']
        return l
    o.label('K2_LAST')
    phaseB(o,0,0,0,True,last=['s_waitcnt lgkmcnt(0)','s_cmp_lg_u32 s45, 0','s_cbranch_scc1 K2_NOEL']+epi_loads()+['K2_NOEL:'])
    o('s_nop 1'); o(aggm(1)[1])
    o('s_cmp_eq_u32 s45, 0'); o('s_cbranch_scc1 K2_EPI')
    o.label('K2_LOOPEND')
    o('s_cmp_eq_u32 s45, 0'); o('s_cbranch_scc1 K2_EPI0')
    o('s_waitcnt vmcnt(0) lgkmcnt(0)'); o('s_barrier'); o('s_mov_b32 s56, 0'); o('s_branch K2_ROUND')
    o.label('K2_OVF')
    o('s_movk_i32 s51, 256'); o(f's_movk_i32 s61, {256 if ND else 0}'); o('s_waitcnt vmcnt(0) lgkmcnt(0)'); o('s_barrier'); o('s_mov_b32 s56, 0'); o('s_branch K2_ROUND')
    o.label('K2_EPI0')
    o('s_waitcnt lgkmcnt(0)')
    weave(o,epi_loads(),{})
    o.label('K2_EPI')
    cyc(o,12,1); stamp(o,9,'2')
    o('s_nop 9')
    o(f's_mov_b32 s46, {f2u(-LN2)}'); o(f's_mov_b32 s47, {f2u(-LOG2E)}')
    o('s_mov_b32 s48, s46'); o('s_mov_b32 s49, s46')
    for i in range(0,32,2): o(f'v_pk_mul_f32 {r(AGG+i,2)}, {r(AGG+i,2)}, s[48:49]')
    o('s_mov_b32 s48, s47'); o('s_mov_b32 s49, s47')
    for i in range(16): o(f'v_cvt_pk_bf16_f32 v{AGG+i}, v{AGG+2*i}, v{AGG+2*i+1}')
    o('v_cmp_gt_u32 vcc, 25, v35'); o('v_lshlrev_b32 v2, 7, v35'); o('v_lshl_add_u32 v2, v36, 6, v2'); o('v_mov_b32 v3, 0x7ffffff0')
    o('v_cndmask_b32 v2, v3, v2, vcc')
    OST=os.environ.get('OST','nt')
    if OST!='0':
        o('v_and_b32 v9, 7, v35'); o('v_lshlrev_b32 v10, 2, v36'); o('v_xor_b32 v9, v9, v10'); o('v_lshlrev_b32 v9, 4, v9')
        o('v_lshlrev_b32 v10, 7, v35'); o('v_add_u32 v10, s44, v10')
        for q in range(4): o(f'v_xor_b32 v{4+q}, {16*q}, v9'); o(f'v_add_u32 v{4+q}, v{4+q}, v10')
        o('v_lshrrev_b32 v8, 3, v1'); o('v_xor_b32 v8, v8, v1'); o('v_and_b32 v8, 7, v8'); o('v_lshlrev_b32 v8, 4, v8')
        o('v_and_b32 v9, 0x380, v38'); o('v_add3_u32 v8, v8, v9, s44')
        o('v_cmp_gt_u32 vcc, 8, v1'); o('s_nop 1'); o('v_cndmask_b32 v10, v3, v38, vcc')
    o('s_waitcnt vmcnt(0) lgkmcnt(0)')
    stamp(o,10,'2')
    for mt in range(2):
        for ks in range(8):
            b=XG+4*ks if ks<4 else AGG+4*(ks-4)
            o(mfma(P[mt],WS+8*ks+4*mt,b,'0' if ks==0 else None))
    o('s_nop 11')
    for mt in range(2):
        p=P[mt]
        for i in range(0,16,2): o(f'v_pk_mul_f32 {r(64+i,2)}, {r(p+i,2)}, s[48:49]')
        for i in range(16): o(f'v_exp_f32 v{64+i}, v{64+i}')
        for i in range(0,16,2): o(f'v_pk_add_f32 {r(64+i,2)}, {r(64+i,2)}, 1.0 op_sel_hi:[1,0]')
        for i in range(16): o(f'v_rcp_f32 v{64+i}, v{64+i}')
        for i in range(0,16,2): o(f'v_pk_mul_f32 {r(64+i,2)}, {r(p+i,2)}, {r(64+i,2)}')
        for i in range(8): o(f'v_cvt_pk_bf16_f32 v{80+8*mt+i}, v{64+2*i}, v{65+2*i}')
        for q in range(2): o(f'buffer_store_dwordx4 {r(80+8*mt+4*q,4)}, v2, s[20:23], s14 offen offset:{32*mt+16*q}' if OST=='0' else f'ds_write_b128 v{4+2*mt+q}, {r(80+8*mt+4*q,4)}')
    if OST!='0':
        for j in range(4): o(f'ds_read_b128 {r(96+4*j,4)}, v8 offset:{1024*j}')
        for j in range(4):
            o(f's_waitcnt lgkmcnt({3-j})'); o(f'buffer_store_dwordx4 {r(96+4*j,4)}, v{38 if j<3 else 10}, s[20:23], s14 offen offset:{1024*j} {OST}')
    o('s_waitcnt vmcnt(0)') if STAMP=='2' else None
    stamp(o,11,'2'); stamp_out(o,'2','s3','s12',8)
    o.label('K2_END')
    o('s_endpgm')
    return LDS
```

```python
from common import *
CNT=0; TOT=64; LUT1=128; ML=2304; EL=18688; XS=35072; EB=XS+65536
PD=int(os.environ.get('PD','5')); CAPS=int(os.environ.get('CAPS','1280')); PS=(CAPS+511)//512; ND=CAPS//256; NP=PD+PS
WU=EB+CAPS*32; LDS=WU+16384; assert LDS<=163840
XG=72
WS,WE,Q,AGG,P=128,160,176,192,(224,240)
XA=96; EBUF=(112,64); OHA=116; OHT=56; TMP=40
cXg=(2,3,4,13); cXr=(5,6,7,8); pSRC=9; pEL=10; pDL=11; pD4=12; cL2=14; cL1=15
vBase,vCnt,vG0=16,17,18
vD4=92; vEL=20; vDL=21; vS=88; aT=24; aX=28; aE=(68,69); aL=70; cH=71
vDMA=(124,125,126,127,32,33,34,39)
uid=[0]
def r(a,n): return f'v[{a}:{a+n-1}]'
def mfma(d,a,b,c=None): return f'v_mfma_f32_32x32x16_bf16 {r(d,16)}, {r(a,4)}, {r(b,4)}, {r(d,16) if c is None else c}'

WELO=int(os.environ.get('WELO','0')); ELP=os.environ.get('ELP',''); BAL=int(os.environ.get('BAL','1'))
NX=int(os.environ.get('NX','4')); PRIO=int(os.environ.get('PRIO','30')); PRIOA=int(os.environ.get('PRIOA','0'))
EDP=os.environ.get('EDP','nt')
DROP=os.environ.get('DROP','').split(',')
def pre_x(nt): return [mfma(P[nt],XA+4*s,WS+8*s+4*nt,'0' if s==0 else None) for s in range(4)]
def pre_r(nt,b):
    d=P[nt]; l=[mfma(d,OHA+4*s,Q+8*s+4*nt) for s in range(2)]+[mfma(d,EBUF[b],WE+4*nt)]
    if WELO: l.append(mfma(d,EBUF[b],WE+8+4*nt))
    return l
def aggm(nt): return [mfma(AGG+16*nt,P[nt]+4*s,OHT+4*s) for s in range(2)]
def xaddr(): return [f'v_mad_u32_u16 v{aX+j}, v{vS+j}, s60, v{cXg[j]}' for j in range(4)]
def xdma(b): return [f's_add_u32 m0, s44, {32768*b}','s_nop 0']+[f'buffer_load_dwordx4 v{aX+j}, s[24:27], 0 offen offset:{1024*j} lds' for j in range(4)]
def xreads(b): return [f'ds_read_b128 {r(XA+4*s,4)}, v{cXr[s]} offset:{32768*b}' for s in range(4)]
def sread(off,v=None): return f'ds_read_b128 {r(v or vS,4)}, v{pSRC} offset:{ML+128*off}'
def elread(off,v=None): return f'ds_read_b32 v{v or vEL}, v{pEL} offset:{EL+128*off}'
EM=int(os.environ.get('EM','0')); XPOS=[int(x) for x in os.environ.get('XPOS','44,62,82,100').split(',')]
def eaddr(b): return [f'v_add_u32 v{aE[b]}, v{vEL}, v{cH}']+([f'v_cmp_gt_i32 s[{64+2*b}:{65+2*b}], 0, v{vEL}'] if ND else [])
def eload(b):
    ld=f'buffer_load_dwordx4 {r(EBUF[b],4)}, v{aE[b]}, s[36:39], 0 offen {EDP}'
    if not (ND and EM): return [ld]
    uid[0]+=1; L=f'K2_EL{uid[0]}'
    return [f's_not_b64 exec, s[{64+2*b}:{65+2*b}]',f's_cbranch_execz {L}',ld,L+':','s_mov_b64 exec, -1']
def efix(b):
    if not ND: return []
    return [f'v_xor_b32 v{aL}, 0x80000000, v{aE[b]}', f's_mov_b64 exec, s[{64+2*b}:{65+2*b}]', f'ds_read_b128 {r(EBUF[b],4)}, v{aL}', 's_mov_b64 exec, -1']
def oaddr(): return [f'v_add_u32 v{vDL}, v{vDL}, v{cL2}']
def oreads(): return [f'ds_read2_b64 {r(OHA+4*s,4)}, v{vDL} offset0:{132*s} offset1:{132*s+66}' for s in range(2)]
def taddr(): return [f'v_add_u32_sdwa v{aT+q}, v{vD4+q}, v{cL1} dst_sel:DWORD dst_unused:UNUSED_PAD src0_sel:BYTE_2 src1_sel:DWORD' for q in range(4)]
def treads(): return [f'ds_read_b64_tr_b16 {r(OHT+2*q,2)}, v{aT+q}' for q in range(4)]
def dma(k,v): return [f's_add_u32 m0, s57, {8192*k}', 's_nop 0', f'buffer_load_dwordx4 v{v}, s[28:31], 0 offen {ELP} lds']
def silu(p):
    l=[f'v_exp_f32 v{TMP+i}, v{p+i}' for i in range(16)]
    l+=[f'v_pk_add_f32 {r(TMP+i,2)}, {r(TMP+i,2)}, 1.0 op_sel_hi:[1,0]' for i in range(0,16,2)]
    l+=[f'v_rcp_f32 v{TMP+i}, v{TMP+i}' for i in range(16)]
    l+=[f'v_pk_mul_f32 {r(TMP+i,2)}, {r(p+i,2)}, {r(TMP+i,2)}' for i in range(0,16,2)]
    l+=[f'v_cvt_pk_bf16_f32 v{p+i}, v{TMP+2*i}, v{TMP+2*i+1}' for i in range(8)]
    return l
def weave(o0,main,side):
    def o(x):
        if x.endswith(':'): o0.label(x[:-1]); return
        for d in DROP:
            if d and x.startswith(d.replace(';',',')): return
        o0(x)
    for i in range(len(main)+1):
        for x in side.get(i,[]): o(x)
        if i<len(main): o(main[i])
class Side(dict):
    def add(s,p,x): s.setdefault(p,[]).extend(x if isinstance(x,list) else [x])
def phaseA(o,u,vm,dmas,first=False,ramp=False):
    S=Side(); nb=1-u
    S.add(0,[f'ds_read_b128 {r(vD4,4)}, v{pD4} offset:{ML+128*u}', sread(u+2 if ramp else u+3), elread(u+2), f'ds_read_u8 v{vDL}, v{pEL} offset:{ML+2+128*(u+1)}'])
    if PRIO: S.add(PRIOA,'s_setprio 1')
    if not first: S.add(1,aggm(1)[1])
    for p,x in zip((4,7,10,13),pre_x(1)): S.add(p,x)
    S.add(14,['s_waitcnt lgkmcnt(0)']+taddr())
    S.add(16,f's_waitcnt vmcnt({vm})')
    for i,x in enumerate(xreads(nb)+treads()): S.add(16+i,x)
    for p,x in zip((24,27,30,33),pre_r(1,u)): S.add(p,x)
    S.add(35,eaddr(u)+oaddr()+xaddr())
    S.add(36,eload(u))
    S.add(37,['s_waitcnt lgkmcnt(0)']+oreads())
    for i,(k,v) in enumerate(dmas): S.add(38+i,dma(k,v))
    x=xdma(u if ramp else nb); S.add(42,x[0])
    if ramp: S.add(48,sread(u+3))
    for i in range(4):
        p=43+i if ramp else XPOS[i]
        if p<56: S.add(p,x[2+i])
    S.add(54,aggm(0)[0])
    weave(o,silu(P[0]),S)
def phaseB(o,u,vm,inc,barchk,last=None,ramp=False):
    S=Side(); nb=1-u
    S.add(2,aggm(0)[1])
    if False:
        uid[0]+=1; L=f'K2_NB{uid[0]}'
        S.add(3,['s_sub_u32 s56, s56, 1','s_cmp_lg_u32 s56, 0',f's_cbranch_scc1 {L}','s_waitcnt vmcnt(9)','s_barrier',L+':'])
    if last is None:
        S.add(14,efix(nb))
        for i in range(4):
            if XPOS[i]>=56 and not ramp: S.add(XPOS[i]-56,xdma(nb)[2+i])
        S.add(27,'s_waitcnt lgkmcnt(0)')
        for p,x in zip((5,8,11,24,27,30,33,36),pre_x(0)+pre_r(0,nb)): S.add(p,x)
        if inc: S.add(13,[f'v_add_u32 v{pSRC}, 256, v{pSRC}',f'v_add_u32 v{pEL}, 256, v{pEL}',f'v_add_u32 v{pD4}, 256, v{pD4}'])
        if ramp: S.add(38,xaddr()); S.add(44,xdma(nb))
    else:
        S.add(4,last)
    if PRIO: S.add(PRIO,'s_setprio 0')
    S.add(54,aggm(1)[0])
    weave(o,silu(P[1]),S)

def gen_k2(o):
    def qblock():
        for nt in range(2):
            for s in range(4): o(mfma(P[nt],XG+4*s,AGG+8*s+4*nt,'0' if s==0 else None))
        o(f's_mov_b32 s46, {f2u(-LOG2E)}')
        o('s_nop 11')
        for nt in range(2):
            for i in range(16): o(f'v_mul_f32 v{P[nt]+i}, s46, v{P[nt]+i}')
            for s in range(2):
                for i in range(4): o(f'v_cvt_pk_bf16_f32 v{Q+8*s+4*nt+i}, v{P[nt]+8*s+2*i}, v{P[nt]+8*s+2*i+1}')
        for i in range(32): o(f'v_mov_b32 v{AGG+i}, 0')
    def xgload():
        o('s_mul_i32 s14, s3, 200'); o('s_mul_i32 s15, s58, 25'); o('s_add_u32 s14, s14, s15'); o('s_lshl_b32 s14, s14, 7')
        for s in range(4): o(f'buffer_load_dwordx4 {r(XA+4*s,4)}, v37, s[16:19], s14 offen offset:{32*s}')
    o.label('k2_kernel', kernel=True)
    o('s_and_b32 s3, s2, 7'); o('s_lshl_b32 s3, s3, 5'); o('s_lshr_b32 s4, s2, 3'); o('s_add_u32 s3, s3, s4')
    o('s_cmp_ge_u32 s2, 256'); o('s_cbranch_scc1 K2_END')
    o('s_cmp_ge_u32 s3, 250'); o('s_cbranch_scc1 K2_END')
    stamp_init(o,'2'); stamp(o,0,'2')
    o('s_load_dwordx2 s[4:5], s[0:1], 0'); o('s_load_dwordx2 s[8:9], s[0:1], 8'); o('s_load_dwordx2 s[6:7], s[0:1], 48'); o('s_load_dwordx2 s[10:11], s[0:1], 64')
    o('v_lshrrev_b32 v32, 6, v0'); o('v_and_b32 v1, 63, v0'); o('v_readfirstlane_b32 s12, v32')
    o('v_and_b32 v33, 255, v0' if ND else 'v_lshrrev_b32 v33, 1, v0'); o('v_lshlrev_b32 v34, 11, v33')
    o('s_lshl_b32 s13, s3, 2'); o(f's_cmp_lt_u32 s12, {4 if ND else 8}'); o('s_cselect_b32 s15, 1024, 0'); o('s_add_u32 s13, s13, s15')
    o('v_and_b32 v35, 31, v1'); o('v_lshrrev_b32 v36, 5, v1')
    o('v_lshlrev_b32 v37, 7, v35'); o('v_lshl_add_u32 v37, v36, 4, v37')
    o('v_cmp_gt_u32 vcc, 25, v35'); o('v_mov_b32 v38, 0x7ffffff0'); o('s_nop 0'); o('v_cndmask_b32 v37, v38, v37, vcc')
    o('v_lshlrev_b32 v38, 4, v1')
    o('s_waitcnt lgkmcnt(0)')
    srd_off(o,64,'s10','s11',WS_T,250*2048)
    o('buffer_load_dword v39, v34, s[64:67], s13 offen')
    srd(o,16,'s4','s5',N*128); srd(o,20,'s6','s7',N*128)
    srd_off(o,28,'s10','s11',WS_E2,E*32); srd_off(o,32,'s10','s11',WS_M2,E*8); srd_off(o,40,'s10','s11',WS_WF,36*1024)
    o('s_lshl_b32 s46, s12, 10'); o(f's_add_u32 s57, s46, {EB}')
    for k in range(3):
        if k==2: o('s_cmp_ge_u32 s12, 4'); o('s_cbranch_scc1 K2_WD')
        o(f's_add_u32 m0, s46, {XS+16384+8192*k}'); o(f's_add_u32 s45, s46, {8192*k}')
        o('buffer_load_dwordx4 v38, s[40:43], s45 offen lds')
    o.label('K2_WD')
    srd(o,36,'s8','s9',E*32)
    o('s_sub_u32 s24, s4, 4096'); o('s_subb_u32 s25, s5, 0'); o(f's_mov_b32 s26, {N*128+4096}'); o('s_mov_b32 s27, 0x00020000')
    o('s_movk_i32 s60, 128')
    o('v_and_b32 v40, 7, v1'); o('v_lshrrev_b32 v41, 4, v1'); o('v_xor_b32 v40, v40, v41'); o('v_lshlrev_b32 v40, 4, v40'); o('v_xor_b32 v41, 64, v40')
    for j in range(4): o(f'v_add_u32 v{cXg[j]}, {4096-1024*j}, v{40+j%2}')
    o('s_lshl_b32 s44, s12, 12'); o(f's_add_u32 s44, s44, {XS}')
    o('v_bfe_u32 v41, v1, 1, 3'); o('v_xor_b32 v41, v41, v36'); o('v_lshlrev_b32 v41, 4, v41')
    o('v_lshlrev_b32 v40, 7, v35'); o('v_add_u32 v40, s44, v40')
    for s in range(4):
        o(f'v_xor_b32 v42, {32*s}, v41'); o(f'v_add_u32 v{cXr[s]}, v40, v42')
    o(f'v_lshlrev_b32 v{cH}, 4, v36')
    o(f'v_mul_u32_u24 v{cL2}, 264, v36'); o(f'v_add_u32 v{cL2}, {LUT1}, v{cL2}')
    o('v_bfe_u32 v40, v1, 4, 1'); o('v_and_b32 v41, 3, v1'); o('v_lshl_add_u32 v40, v40, 2, v41')
    o(f'v_mul_u32_u24 v{cL1}, 264, v40'); o(f'v_add_u32 v{cL1}, {LUT1}, v{cL1}')
    o('v_bfe_u32 v40, v0, 5, 3')
    o('v_lshlrev_b32 v41, 2, v40'); o('v_sub_u32 v41, v35, v41')
    o('v_cmp_gt_u32 vcc, 4, v41')
    o('v_mov_b32 v42, 0x3f80'); o('v_mov_b32 v43, 0'); o('v_cndmask_b32 v42, v43, v42, vcc')
    o('v_lshlrev_b32 v41, 4, v41'); o('v_lshlrev_b64 v[42:43], v41, v[42:43]')
    o('v_mul_u32_u24 v44, 264, v40'); o('v_lshl_add_u32 v44, v35, 3, v44')
    o(f'ds_write_b64 v44, v[42:43] offset:{LUT1}')
    o('v_mov_b32 v44, 0'); o('v_mov_b32 v45, 0'); o(f'ds_write_b64 v44, v[44:45] offset:{TOT}')
    o('s_mov_b32 s50, 0'); o('s_mov_b32 s59, 0'); o(f's_movk_i32 s51, {PD*512}'); o(f's_movk_i32 s61, {CAPS}'); o('s_mov_b32 s52, 1')
    o.label('K2_ROUND')
    o('v_lshlrev_b32 v40, 4, v0'); o('v_lshlrev_b32 v41, 3, v0')
    for i in range(4): o(f'v_mov_b32 v{44+i}, 0x00f8ffff'); o(f'v_mov_b32 v{48+i}, 0'); o(f'v_mov_b32 v{52+i}, 0x03ffffff')
    o(f'ds_write_b128 v40, v[44:47] offset:{ML}'); o(f'ds_write_b128 v40, v[44:47] offset:{ML+8192}')
    for a in (EL,EL+8192,XS,XS+8192): o(f'ds_write_b128 v40, v[52:55] offset:{a}')
    for i in range(4): o(f'ds_write_b128 v48, v[48:51] offset:{CNT+16*i}')
    o(f's_waitcnt vmcnt(0) lgkmcnt(0)'); o('s_barrier')
    o('s_cmp_eq_u32 s52, 0'); o('s_cbranch_scc1 K2_NOSCAN')
    stamp(o,1,'2')
    XR=XS+36864
    o('s_lshl_b32 s46, s12, 10'); o('s_mul_i32 s15, s3, 25600'); o('s_add_u32 s15, s15, s46'); o('v_add_u32 v40, s15, v38')
    for k in (3,0,1,2):
        if k==3: o('s_cmp_ge_u32 s12, 2'); o('s_cbranch_scc1 K2_XD')
        o(f's_add_u32 m0, s46, {XR+8192*k}'); o(f'v_add_u32 v41, {8192*k}, v40')
        o('buffer_load_dwordx4 v41, s[16:19], 0 offen lds')
        if k==3: o.label('K2_XD')
    for k in range(2):
        o(f's_add_u32 m0, s46, {WU+8192*k}'); o(f's_add_u32 s45, s46, {20480+8192*k}')
        o('buffer_load_dwordx4 v38, s[40:43], s45 offen lds')
    o(f'v_lshrrev_b32 v{vCnt}, 16, v39'); o('v_and_b32 v39, 0xffff, v39')
    o('s_movk_i32 s46, 3200'); o(f'v_mad_u32_u24 v{vG0}, v33, s46, v39')
    if ND: o(f'v_mov_b32 v41, v{vCnt}')
    else: o('v_and_b32 v40, 1, v0'); o('v_sub_u32 v40, 1, v40'); o(f'v_mul_u32_u24 v41, v40, v{vCnt}')
    wave_scan(o,'v41')
    o(f's_and_b32 s47, s12, {4 if ND else 0}'); o('v_readlane_b32 s46, v41, 63')
    o('s_mov_b64 exec, 1'); o('v_mov_b32 v43, s47'); o('v_mov_b32 v42, s46')
    o(f'ds_add_rtn_u32 v42, v43, v42 offset:{TOT}')
    o('s_waitcnt lgkmcnt(0)'); o('v_readfirstlane_b32 s46, v42'); o('s_mov_b64 exec, -1')
    o(f'v_sub_u32 v{vBase}, v41, v{vCnt}'); o(f'v_add_u32 v{vBase}, s46, v{vBase}')
    o.label('K2_NOSCAN')
    o(f's_cmp_lt_u32 s12, {4 if ND else 8}'); o('s_cselect_b32 s46, s50, s59'); o('s_cselect_b32 s47, s51, s61'); o(f's_cselect_b32 s48, 0, {PD*2048}')
    o(f'v_sub_u32 v40, s46, v{vBase}')
    o('v_add_u32 v41, s47, v40'); o(f'v_min_i32 v41, v41, v{vCnt}')
    o('v_max_i32 v42, 0, v40')
    if not ND: o('v_and_b32 v43, 1, v0'); o('v_add_u32 v42, v42, v43')
    o('v_sub_u32 v43, v42, v40'); o('v_lshl_add_u32 v43, v43, 2, s48')
    o(f'v_add_u32 v42, v42, v{vG0}'); o(f'v_add_u32 v41, v41, v{vG0}')
    o.label('K2_GL')
    st=1 if ND else 2
    for i in range(8):
        o('v_cmpx_lt_i32 vcc, v42, v41'); o(f'ds_write_b32 v43, v42 offset:{XS+4*st*i}'); o(f'v_add_u32 v42, {st}, v42')
    o(f'v_add_u32 v43, {32*st}, v43'); o('s_cbranch_execnz K2_GL')
    o.label('K2_GD')
    o('s_mov_b64 exec, -1')
    o('s_waitcnt lgkmcnt(0)'); o('s_barrier')
    stamp(o,2,'2')
    G,MT,GR,RK,CA=44,72,88,224,232
    o('v_lshlrev_b32 v40, 2, v0'); o('v_mov_b32 v41, 0')
    for k in range(NP): o(f'ds_read_b32 v{G+k}, v40 offset:{XS+2048*k}')
    o(f'ds_read_b64 v[54:55], v41 offset:{TOT}')
    o('v_and_b32 v42, 0x1fe, v0'); o('v_lshlrev_b32 v42, 1, v42')
    o('v_and_b32 v43, 1, v0'); o('v_lshlrev_b32 v43, 4, v43')
    o('s_waitcnt lgkmcnt(0)')
    dv=list(vDMA)
    for k in range(ND): o(f'ds_read_b32 v{dv[k]}, v42 offset:{XS+PD*2048+1024*k}')
    order=sorted(range(NP),key=lambda k:((k+0.5)*512/max(1,3200-M) if k<PD else (k-PD+0.5)*512/max(1,M)))
    if os.environ.get('ORD','S')=='S': order=list(range(PD,NP))+list(range(PD))
    if os.environ.get('ORD','S')[0].isdigit(): order=[int(c) for c in os.environ['ORD']]
    for k in order:
        o(f'v_lshlrev_b32 v{G+k}, 3, v{G+k}')
        o(f'buffer_load_dwordx2 {r(MT+2*k,2)}, v{G+k}, s[32:35], 0 offen' if k<PD else f'buffer_load_dword v{MT+2*k}, v{G+k}, s[32:35], 0 offen')
    o('v_readfirstlane_b32 s53, v54'); o('v_readfirstlane_b32 s62, v55')
    o('s_waitcnt lgkmcnt(0)')
    for k in range(ND): o(f'v_lshl_add_u32 v{dv[k]}, v{dv[k]}, 5, v43')
    D1=min(ND,int(os.environ.get('D1','0')))
    for k in range(D1):
        for x in dma(k,dv[k]): o(x)
    o('s_sub_i32 s54, s53, s50'); o('s_min_i32 s54, s54, s51'); o('s_sub_i32 s63, s62, s59'); o('s_min_i32 s63, s63, s61')
    stamp(o,3,'2')
    o('s_cmp_eq_u32 s52, 0'); o('s_cbranch_scc1 K2_NOW')
    o(f'v_add_u32 v44, {XS+16384}, v38')
    for i in [i for i in range(20) if WELO or i not in (10,11)]: o(f'ds_read_b128 {r(WS+4*i if i<12 else AGG+4*(i-12),4)}, v44 offset:{1024*i}')
    o.label('K2_NOW')
    o('v_mov_b32 v41, 1')
    for k in range(NP):
        kk=k if k<PD else k-PD
        o(f'v_add_u32 v40, {512*kk}, v0')
        o(f'v_cmp_gt_i32 s[{64+2*k}:{65+2*k}], {"s54" if k<PD else "s63"}, v40')
        if k>=PD: o('v_lshlrev_b32 v40, 5, v40'); o(f'v_add_u32 v{MT+2*k+1}, {hex(0x80000000+EB)}, v40')
    for i,k in enumerate(order):
        o(f's_waitcnt vmcnt({NP+D1-1-i})')
        o(f'v_lshrrev_b32 v{GR+k}, 24, v{MT+2*k}'); o(f'v_lshlrev_b32 v{CA+k}, 2, v{GR+k}')
        o(f's_mov_b64 exec, s[{64+2*k}:{65+2*k}]')
        o(f'ds_add_rtn_u32 v{RK+k}, v{CA+k}, v41 offset:{CNT}')
        o('s_mov_b64 exec, -1')
    o('s_movk_i32 s46, 512')
    stamp(o,4,'2')
    def lw(k):
        o(f'v_cmp_gt_u32 vcc, s46, v{RK+k}')
        o(f'v_lshl_add_u32 v{RK+k}, v{GR+k}, 9, v{RK+k}'); o(f'v_lshlrev_b32 v{CA+k}, 2, v{RK+k}')
        o(f's_and_b64 exec, vcc, s[{64+2*k}:{65+2*k}]')
        o(f'ds_write2st64_b32 v{CA+k}, v{MT+2*k}, v{MT+2*k+1} offset0:{ML//256} offset1:{EL//256}')
        o('s_mov_b64 exec, -1')
    for i,k in enumerate(order):
        o(f's_waitcnt lgkmcnt({NP-1})'); lw(k)
    for k in range(D1,ND):
        for x in dma(k,dv[k]): o(x)
    o('v_and_b32 v40, 7, v1'); o('v_lshlrev_b32 v40, 2, v40')
    o('v_lshrrev_b32 v52, 3, v1'); o('v_lshlrev_b32 v52, 2, v52')
    o('s_waitcnt lgkmcnt(0)'); o('s_barrier')
    stamp(o,5,'2')
    o(f'ds_read_b32 v41, v40 offset:{CNT}'); o(f'ds_read_b32 v53, v52 offset:{CNT}')
    o('s_waitcnt lgkmcnt(0)')
    o('s_cmp_eq_u32 s52, 0'); o('s_cbranch_scc1 K2_NOSEL')
    if BAL:
        o('v_lshl_add_u32 v53, v53, 5, v52'); o('v_lshl_add_u32 v54, v41, 5, v40')
        o('v_cmp_gt_u32 vcc, v54, v53')
        o('s_sub_u32 s47, 11, s12'); o('s_cmp_lt_u32 s12, 4'); o('s_cselect_b32 s47, s12, s47')
        o('s_mov_b32 s58, 0')
        for gi in range(1,8):
            o(f's_bfe_u32 s48, {"vcc_lo" if gi<4 else "vcc_hi"}, {hex((8<<16)|(8*(gi%4)))}'); o('s_bcnt1_i32_b32 s48, s48')
            o('s_cmp_eq_u32 s48, s47'); o(f's_cselect_b32 s58, {gi}, s58')
    o('s_mul_i32 s14, s3, 200'); o('s_mul_i32 s15, s58, 25'); o('s_add_u32 s14, s14, s15'); o('s_lshl_b32 s14, s14, 7')
    o('s_lshl_b32 s15, s15, 7'); o(f's_add_u32 s15, s15, {XR}')
    o(f'v_lshl_add_u32 v53, v35, 7, v{cH}'); o('v_add_u32 v53, s15, v53')
    for s in range(4): o(f'ds_read_b128 {r(XG+4*s,4)}, v53 offset:{32*s}')
    o('s_mov_b32 s56, 1')
    o.label('K2_NOSEL')
    o('s_lshl_b32 s47, s58, 9')
    o('v_add_u32 v40, s47, v52'); o(f'v_lshlrev_b32 v{pSRC}, 2, v40')
    o('v_and_b32 v40, 7, v1'); o('v_bfe_u32 v53, v1, 3, 2'); o('v_lshl_add_u32 v40, v40, 2, v53')
    o(f'v_add_u32 v{pDL}, s47, v40'); o(f'v_lshlrev_b32 v{pEL}, 2, v{pDL}')
    o('v_bfe_u32 v53, v1, 2, 2'); o('v_lshl_add_u32 v40, v36, 2, v53')
    o('v_lshlrev_b32 v40, 2, v40'); o(f'v_add_lshl_u32 v{pD4}, s47, v40, 2')
    o('v_cmp_lt_u32 vcc, s46, v41'); o('v_readlane_b32 s55, v41, s58')
    stamp(o,6,'2')
    o(sread(0)); o(elread(0)); o(sread(1,48)); o(elread(1,44)); o(f'ds_read_u8 v{vDL}, v{pEL} offset:{ML+2}')
    o('s_add_u32 s55, s55, 31'); o('s_lshr_b32 s55, s55, 5')
    o('s_mov_b64 s[48:49], vcc')
    o('s_waitcnt lgkmcnt(0)')
    for x in xaddr()+xdma(0): o(x)
    for x in eaddr(0)+[x for x in eload(0) if x.startswith('buffer')]: o(x)
    [o(f'v_mov_b32 v{vS+i}, v{48+i}') for i in range(4)]; o(f'v_mov_b32 v{vEL}, v44')
    for x in xaddr()+eaddr(1)+oaddr()+oreads()+[sread(2)]: o(x)
    o('s_cmp_eq_u32 s52, 0'); o('s_cbranch_scc1 K2_NOQ')
    o('s_mov_b32 s52, 0')
    qblock()
    o.label('K2_NOQ')
    o('s_waitcnt vmcnt(4)'); o('s_barrier')
    o('s_cmp_lg_u64 s[48:49], 0'); o('s_cbranch_scc1 K2_OVF')
    stamp(o,7,'2')
    o('s_add_u32 s50, s50, s51'); o('s_add_u32 s59, s59, s61')
    o('s_cmp_lt_u32 s50, s53'); o('s_cselect_b32 s45, 1, 0'); o('s_cmp_lt_u32 s59, s62'); o('s_cselect_b32 s45, 1, s45')
    o('s_cmp_eq_u32 s55, 0'); o('s_cbranch_scc1 K2_LOOPEND')
    RAMP=int(os.environ.get('RAMP','1'))
    if RAMP==0:
        for x in xdma(1)+eload(1): o(x)
    o(f's_waitcnt vmcnt({0 if RAMP else 5})')
    for x in xreads(0)+efix(0): o(x)
    if RAMP: weave(o,xdma(1)+eload(1),{})
    for i in range(4): o(f'v_mov_b32 v{OHT+4+i}, 0'); o(f'v_mov_b32 v{P[1]+4+i}, 0')
    o('s_waitcnt lgkmcnt(0)')
    for x in pre_x(0)+pre_r(0,0): o(x)
    if RAMP<2:
        for x in xaddr()+xdma(0): o(x)
    o('s_nop 7')
    stamp(o,8,'2'); cyc(o,12,0)
    if RAMP==2:
        phaseA(o,0,0,[],first=True,ramp=True)
        o('s_sub_u32 s55, s55, 1'); o('s_cmp_eq_u32 s55, 0'); o('s_cbranch_scc1 K2_LAST')
        phaseB(o,0,5,0,True,ramp=True)
        o('s_waitcnt vmcnt(4)'); o('s_branch K2_LOOP1')
    AL=int(os.environ.get('AL','0'))
    if AL: o('.p2align 6, , 63')
    if AL==2: o('s_nop 0')
    o.label('K2_LOOP')
    for u in range(2):
        if u: o.label('K2_LOOP1')
        phaseA(o,u,4,[])
        o('s_sub_u32 s55, s55, 1'); o('s_cmp_eq_u32 s55, 0'); o('s_cbranch_scc1 K2_LAST')
        phaseB(o,u,9,u,True)
    o('s_branch K2_LOOP')
    def epi_loads():
        uid[0]+=1; L=f'K2_XV{uid[0]}'
        l=[f'v_add_u32 v{aL}, {WU}, v38']+[f'ds_read_b128 {r(WS+4*i,4)}, v{aL} offset:{1024*i}' for i in range(16)]
        l+=['s_cmp_eq_u32 s56, 1',f's_cbranch_scc1 {L}']+[f'buffer_load_dwordx4 {r(XG+4*s,4)}, v37, s[16:19], s14 offen offset:{32*s}' for s in range(4)]+[L+':']
        return l
    o.label('K2_LAST')
    phaseB(o,0,0,0,True,last=['s_waitcnt lgkmcnt(0)','s_cmp_lg_u32 s45, 0','s_cbranch_scc1 K2_NOEL']+epi_loads()+['K2_NOEL:'])
    o('s_nop 1'); o(aggm(1)[1])
    o('s_cmp_eq_u32 s45, 0'); o('s_cbranch_scc1 K2_EPI')
    o.label('K2_LOOPEND')
    o('s_cmp_eq_u32 s45, 0'); o('s_cbranch_scc1 K2_EPI0')
    o('s_waitcnt vmcnt(0) lgkmcnt(0)'); o('s_barrier'); o('s_mov_b32 s56, 0'); o('s_branch K2_ROUND')
    o.label('K2_OVF')
    o('s_movk_i32 s51, 256'); o(f's_movk_i32 s61, {256 if ND else 0}'); o('s_waitcnt vmcnt(0) lgkmcnt(0)'); o('s_barrier'); o('s_mov_b32 s56, 0'); o('s_branch K2_ROUND')
    o.label('K2_EPI0')
    o('s_waitcnt lgkmcnt(0)')
    weave(o,epi_loads(),{})
    o.label('K2_EPI')
    cyc(o,12,1); stamp(o,9,'2')
    o('s_nop 9')
    o(f's_mov_b32 s46, {f2u(-LN2)}'); o(f's_mov_b32 s47, {f2u(-LOG2E)}')
    o('s_mov_b32 s48, s46'); o('s_mov_b32 s49, s46')
    for i in range(0,32,2): o(f'v_pk_mul_f32 {r(AGG+i,2)}, {r(AGG+i,2)}, s[48:49]')
    o('s_mov_b32 s48, s47'); o('s_mov_b32 s49, s47')
    for i in range(16): o(f'v_cvt_pk_bf16_f32 v{AGG+i}, v{AGG+2*i}, v{AGG+2*i+1}')
    o('v_cmp_gt_u32 vcc, 25, v35'); o('v_lshlrev_b32 v2, 7, v35'); o('v_lshl_add_u32 v2, v36, 6, v2'); o('v_mov_b32 v3, 0x7ffffff0')
    o('v_cndmask_b32 v2, v3, v2, vcc')
    OST=os.environ.get('OST','nt')
    if OST!='0':
        o('v_and_b32 v9, 7, v35'); o('v_lshlrev_b32 v10, 2, v36'); o('v_xor_b32 v9, v9, v10'); o('v_lshlrev_b32 v9, 4, v9')
        o('v_lshlrev_b32 v10, 7, v35'); o('v_add_u32 v10, s44, v10')
        for q in range(4): o(f'v_xor_b32 v{4+q}, {16*q}, v9'); o(f'v_add_u32 v{4+q}, v{4+q}, v10')
        o('v_lshrrev_b32 v8, 3, v1'); o('v_xor_b32 v8, v8, v1'); o('v_and_b32 v8, 7, v8'); o('v_lshlrev_b32 v8, 4, v8')
        o('v_and_b32 v9, 0x380, v38'); o('v_add3_u32 v8, v8, v9, s44')
        o('v_cmp_gt_u32 vcc, 8, v1'); o('s_nop 1'); o('v_cndmask_b32 v10, v3, v38, vcc')
    o('s_waitcnt vmcnt(0) lgkmcnt(0)')
    stamp(o,10,'2')
    for mt in range(2):
        for ks in range(8):
            b=XG+4*ks if ks<4 else AGG+4*(ks-4)
            o(mfma(P[mt],WS+8*ks+4*mt,b,'0' if ks==0 else None))
    o('s_nop 11')
    for mt in range(2):
        p=P[mt]
        for i in range(0,16,2): o(f'v_pk_mul_f32 {r(64+i,2)}, {r(p+i,2)}, s[48:49]')
        for i in range(16): o(f'v_exp_f32 v{64+i}, v{64+i}')
        for i in range(0,16,2): o(f'v_pk_add_f32 {r(64+i,2)}, {r(64+i,2)}, 1.0 op_sel_hi:[1,0]')
        for i in range(16): o(f'v_rcp_f32 v{64+i}, v{64+i}')
        for i in range(0,16,2): o(f'v_pk_mul_f32 {r(64+i,2)}, {r(p+i,2)}, {r(64+i,2)}')
        for i in range(8): o(f'v_cvt_pk_bf16_f32 v{80+8*mt+i}, v{64+2*i}, v{65+2*i}')
        for q in range(2): o(f'buffer_store_dwordx4 {r(80+8*mt+4*q,4)}, v2, s[20:23], s14 offen offset:{32*mt+16*q}' if OST=='0' else f'ds_write_b128 v{4+2*mt+q}, {r(80+8*mt+4*q,4)}')
    if OST!='0':
        for j in range(4): o(f'ds_read_b128 {r(96+4*j,4)}, v8 offset:{1024*j}')
        for j in range(4):
            o(f's_waitcnt lgkmcnt({3-j})'); o(f'buffer_store_dwordx4 {r(96+4*j,4)}, v{38 if j<3 else 10}, s[20:23], s14 offen offset:{1024*j} {OST}')
    o('s_waitcnt vmcnt(0)') if STAMP=='2' else None
    stamp(o,11,'2'); stamp_out(o,'2','s3','s12',8)
    o.label('K2_END')
    o('s_endpgm')
    return LDS
```

```python
import sys
from common import *
import k1,k2
o=Out()
l1=k1.gen_k1(o); l2=k2.gen_k2(o)
DIAG=os.environ.get('DIAG','')
extra=''; ed=''
if DIAG:
    def inj(lbl,slot):
        i=o.l.index(lbl+':')
        o.l[i+1:i+1]=['    '+x for x in ['s_memrealtime s[80:81]','s_load_dwordx2 s[82:83], s[0:1], 64','s_waitcnt lgkmcnt(0)','s_cmp_lg_u32 s2, 0',f's_cbranch_scc1 DG{slot}',
          's_add_u32 s84, s82, 0x2100000','s_addc_u32 s85, s83, 0','s_mov_b32 s86, 64','s_mov_b32 s87, 0x00020000','v_mov_b32 v60, s80',f'v_mov_b32 v61, {4*slot}','v_cmp_eq_u32 vcc, 0, v0','s_and_saveexec_b64 s[88:89], vcc',f's_cbranch_execz DH{slot}',
          'buffer_store_dword v60, v61, s[84:87], 0 offen']]+[f'DH{slot}:','    s_mov_b64 exec, s[88:89]',f'DG{slot}:']
    inj('k1_kernel',0); inj('k2_kernel',1)
    o.label('k3_kernel',kernel=True)
    for x in ['s_memrealtime s[10:11]','s_load_dwordx2 s[4:5], s[0:1], 64','s_waitcnt lgkmcnt(0)','s_add_u32 s4, s4, 0x2100000','s_addc_u32 s5, s5, 0','s_load_dwordx2 s[6:7], s[4:5], 0','s_waitcnt lgkmcnt(0)',
       {'0':'s_mov_b32 s8, 0','A':'s_sub_u32 s8, s7, s6','B':'s_sub_u32 s8, s10, s7'}[DIAG],'s_min_u32 s8, s8, 10000','s_mul_i32 s8, s8, 10']: o(x)
    o.label('K3L')
    for x in ['s_memrealtime s[12:13]','s_waitcnt lgkmcnt(0)','s_sub_u32 s12, s12, s10','s_cmp_lt_u32 s12, s8','s_cbranch_scc1 K3L','s_endpgm']: o(x)
    extra='; @launch kernel=k3_kernel grid=(1,1,1) block=(64,1,1) lds=0\n'; ed=desc('k3_kernel',8)
hdr=open('standalone__mpnn_edge_mlp__graph.s.ref').read().split('; Override launch')[0]
txt=hdr+f"""; @launch kernel=k1_kernel grid=({512 if XP else 253},1,1) block=(1024,1,1) lds={l1}
; @launch kernel=k2_kernel grid=(256,1,1) block=(512,1,1) lds={l2}
{extra}.amdgcn_target "amdgcn-amd-amdhsa--gfx950"
.text
; k1_kernel: 250 workgroups each counting-sort 3200 edges by 200-node destination bin in LDS, write
;   8-byte edge records plus a run table, and move part of the edge payload into sorted order.
;   Three more workgroups lay the weights out as MFMA fragments.
; k2_kernel: one workgroup per bin builds per-25-node edge lists in LDS; each wave gathers x[src] and the
;   edge attributes, runs the message GEMM, SiLU (exp2 + rcp), the segment sum as a one-hot MFMA,
;   and the update GEMM + SiLU. Bins or groups that exceed the list capacity run in several rounds.
"""+o.text()+'.section .rodata,"a"\n'+desc('k1_kernel',64)+desc('k2_kernel',256)+ed
out=sys.argv[1] if len(sys.argv)>1 else 'standalone__mpnn_edge_mlp__graph.s'
open(out,'w').write(txt)
```
